```python
import torch

def _softmax(x, axis=-1):
    return torch.softmax(x, dim=axis)

def _gelu(x):
    return torch.nn.functional.gelu(x, approximate='tanh')

def _silu(x):
    return torch.nn.functional.silu(x)

def _sigmoid(x):
    return torch.sigmoid(x)

def _layernorm(x, axis=-1, eps=1e-05):
    m = x.mean(dim=axis, keepdim=True)
    v = x.var(dim=axis, keepdim=True, unbiased=False)
    return (x - m) / torch.sqrt(v + eps)

def _scatter_add(tgt, idx, src, axis=0):
    return tgt.clone().index_add_(axis, idx, src)

def _segment_sum(src, seg, n):
    out = torch.zeros((n,) + src.shape[1:], dtype=src.dtype)
    return out.index_add_(0, seg, src)

def _pad(x, pw):
    flat = tuple((v for pair in reversed(pw) for v in pair))
    return torch.nn.functional.pad(x, flat)
kernel_name = 'adaLN_cond__ssm_conv_s4__moe_arch_mod__prompt'

def setup_inputs():

    _w = lambda a: (lambda t: t.to(torch.bfloat16) if t.is_floating_point() else t)(torch.as_tensor(a))

    def _A_setup():
        B, L, D, N = (1, 2048, 448, 256)
        A_re = -(lambda _x: torch.exp(torch.as_tensor(_x)))((lambda *s: torch.randn(*s, dtype=torch.bfloat16) * 12.8)(D, N))
        A_im = torch.pi * (lambda *s: torch.randn(*s, dtype=torch.bfloat16) * 0.05)(D, N)
        B_re = (lambda *s: torch.randn(*s, dtype=torch.bfloat16) * 0.1)(D, N)
        B_im = (lambda *s: torch.randn(*s, dtype=torch.bfloat16) * 0.1)(D, N)
        C_re = (lambda *s: torch.randn(*s, dtype=torch.bfloat16) * 0.1)(D, N)
        C_im = (lambda *s: torch.randn(*s, dtype=torch.bfloat16) * 0.1)(D, N)
        log_dt = (lambda *s: torch.randn(*s, dtype=torch.bfloat16) * 0.05)(D) * 0.5 - 4.0
        Dskip = (lambda *s: torch.randn(*s, dtype=torch.bfloat16) * 0.05)(D)
        return {'u': _w((lambda *s: torch.randn(*s, dtype=torch.bfloat16) * 0.05)(B, L, D)), 'A_re': _w(A_re), 'A_im': _w(A_im), 'B_re': _w(B_re), 'B_im': _w(B_im), 'C_re': _w(C_re), 'C_im': _w(C_im), 'log_dt': _w(log_dt), 'Dskip': _w(Dskip)}
    _A_in = _A_setup()

    def _B_setup():
        B, S, D, F, C = (1, 2048, 448, 1792, 8)
        return {'x': _w((lambda *s: torch.randn(*s, dtype=torch.bfloat16) * 0.05)(B, S, D)), 'w_r': _w((lambda *s: torch.randn(*s, dtype=torch.bfloat16) * 0.05)(D)), 'w_gate': _w((lambda *s: torch.randn(*s, dtype=torch.bfloat16) * 0.05)(D, F)), 'w_up': _w((lambda *s: torch.randn(*s, dtype=torch.bfloat16) * 0.05)(D, F)), 'w_down': _w((lambda *s: torch.randn(*s, dtype=torch.bfloat16) * 0.05)(F, D))}
    _B_in = _B_setup()
    return {'A_u': _A_in['u'], 'A_A_re': _A_in['A_re'], 'A_A_im': _A_in['A_im'], 'A_B_re': _A_in['B_re'], 'A_B_im': _A_in['B_im'], 'A_C_re': _A_in['C_re'], 'A_C_im': _A_in['C_im'], 'A_log_dt': _A_in['log_dt'], 'A_Dskip': _A_in['Dskip'], 'B_x': _B_in['x'], 'B_w_r': _B_in['w_r'], 'B_w_gate': _B_in['w_gate'], 'B_w_up': _B_in['w_up'], 'B_w_down': _B_in['w_down'], 'c': _w((lambda *s: torch.randn(*s, dtype=torch.bfloat16) * 0.1)(1, 448) * 8.0), 'w_mod': _w((lambda *s: torch.randn(*s, dtype=torch.bfloat16) * 0.1)(448, 6 * 448) * 448 ** (-0.5) * 8.0)}

def reference(A_u, A_A_re, A_A_im, A_B_re, A_B_im, A_C_re, A_C_im, A_log_dt, A_Dskip, B_x, B_w_r, B_w_gate, B_w_up, B_w_down, c, w_mod):

    def _A_ref(u, A_re, A_im, B_re, B_im, C_re, C_im, log_dt, Dskip):
        Bsz, L, D = u.shape
        dt = torch.exp(log_dt)[:, None]
        A = A_re + 1j * A_im
        Bc = B_re + 1j * B_im
        Cc = C_re + 1j * C_im
        logdA = dt * A
        dB = dt * Bc
        l = (lambda x, dt: x.to(dt))(torch.arange(L), A_re.dtype)
        P = torch.exp(logdA[:, :, None] * l[None, None, :])
        K = torch.einsum('dn,dnl,dn->dl', Cc, P, dB).real
        L2 = 2 * L
        Kp = _pad(K, ((0, 0), (0, L)))
        up = (lambda x, *d: x.permute(*d))(u, 0, 2, 1)
        up = _pad(up, ((0, 0), (0, 0), (0, L)))
        Kf = (lambda x, axes=(-2, -1): torch.fft.rfft2(x.float(), dim=axes))(Kp[:, None, :], axes=(-2, -1))
        Uf = (lambda x, axes=(-2, -1): torch.fft.rfft2(x.float(), dim=axes))(up[:, :, None, :], axes=(-2, -1))
        Yf = Uf * Kf[None, :, :, :]
        y = (lambda x, s, axes=(-2, -1): torch.fft.irfft2(x, s=s, dim=axes).to(torch.bfloat16))(Yf, (1, L2), axes=(-2, -1))[:, :, 0, :L]
        y = (lambda x, *d: x.permute(*d))(y, 0, 2, 1) + u * Dskip[None, None, :]
        return y

    def _B_ref(x, w_r, w_gate, w_up, w_down):
        B, S, D = x.shape
        C = 8
        r = x @ w_r
        idx = torch.argsort(-r, axis=-1)[:, :C]
        idx_e = (lambda x, n, axis: torch.repeat_interleave(x, n, dim=axis))(idx.reshape(B, C, 1), D, axis=2)
        x_sel = (lambda x, i, axis: torch.take_along_dim(x, i, dim=axis))(x, idx_e, axis=1)
        g = _silu(x_sel @ w_gate)
        u = x_sel @ w_up
        y = g * u @ w_down
        r_sel = _sigmoid((lambda x, i, axis: torch.take_along_dim(x, i, dim=axis))(r, idx, axis=1))
        y = y * r_sel.reshape(B, C, 1)
        b_off = (torch.arange(B) * S).reshape(B, 1)
        flat_idx = (idx + b_off).reshape(B * C)
        zero = (x * 0.0).reshape(B * S, D)
        upd = _scatter_add(zero, flat_idx, y.reshape(B * C, D), axis=0)
        return x + upd.reshape(B, S, D)
    x = A_u
    mod = (_silu(c) @ w_mod).reshape(c.shape[0], 6, 1, -1)
    sa, ca, ga, sb, cb, gb = (mod[:, 0].clone(), mod[:, 1].clone(), mod[:, 2].clone(), mod[:, 3].clone(), mod[:, 4].clone(), mod[:, 5].clone())
    h = _layernorm(x, axis=-1) * (1 + ca) + sa
    x = x + ga * _A_ref(h, A_A_re, A_A_im, A_B_re, A_B_im, A_C_re, A_C_im, A_log_dt, A_Dskip)
    h = _layernorm(x, axis=-1) * (1 + cb) + sb
    x = x + gb * _B_ref(h, B_w_r, B_w_gate, B_w_up, B_w_down)
    return x
```

```python
import re

TRANS = ("v_exp_f32","v_log_f32","v_rcp_f32","v_rsq_f32","v_sqrt_f32","v_sin_f32","v_cos_f32","v_rcp_iflag_f32")
MFMA_INFO = {
    "v_mfma_f32_16x16x32_bf16": ("xdl", 4),
    "v_mfma_f32_32x32x16_bf16": ("xdl", 8),
    "v_mfma_f32_16x16x16_bf16": ("xdl", 4),
    "v_mfma_f32_16x16x4_f32": ("sgemm", 8),
    "v_mfma_f32_32x32x2_f32": ("sgemm", 16),
}
IDX = {2:0,4:1,8:2,16:3}

def regs_of(op):
    op = op.strip()
    neg = op.startswith("-")
    if neg: op = op[1:]
    m = re.match(r"^abs\((.*)\)$", op) or re.match(r"^\|(.*)\|$", op)
    if m: op = m.group(1)
    m = re.match(r"^([vsa])(\d+)$", op)
    if m: return {(m.group(1), int(m.group(2)))}
    m = re.match(r"^([vsa])\[(\d+):(\d+)\]$", op)
    if m: return {(m.group(1), i) for i in range(int(m.group(2)), int(m.group(3))+1)}
    if op == "vcc": return {("s", 106), ("s", 107)}
    if op == "vcc_lo": return {("s", 106)}
    if op == "vcc_hi": return {("s", 107)}
    if op == "exec": return {("s", 126), ("s", 127)}
    if op == "m0": return {("s", 124)}
    return set()

class Ins:
    def __init__(self, text):
        self.text = text
        t = text.split(";")[0].strip()
        self.label = t.endswith(":")
        self.w = set(); self.r = set(); self.kind = "other"; self.mn = ""
        self.srcC = set(); self.srcAB = set(); self.dpp = False; self.nstates = 1
        self.widestore = set()
        if self.label or not t or t.startswith("."):
            self.kind = "label" if self.label else "dir"; self.nstates = 0; return
        parts = t.split(None, 1)
        mn = parts[0]; self.mn = mn
        rest = parts[1] if len(parts) > 1 else ""
        ops = []; cur = ""; depth = 0
        for ch in rest:
            if ch == "[": depth += 1
            if ch == "]": depth -= 1
            if ch == "," and depth == 0: ops.append(cur.strip()); cur = ""
            else: cur += ch
        if cur.strip(): ops.append(cur.strip())
        mods = []
        if ops:
            sp = ops[-1].split()
            ops[-1] = sp[0]; mods = sp[1:]
        self.ops = ops; self.mods = mods
        base = re.sub(r"_(e32|e64|dpp|sdwa)$", "", mn)
        self.base = base
        R = lambda lst: set().union(*[regs_of(o) for o in lst]) if lst else set()
        if any(m.startswith(("quad_perm","row_shr","row_shl","row_ror","row_mirror","row_half_mirror","row_bcast","wave_","row_newbcast")) for m in mods):
            self.dpp = True
        if base == "s_nop":
            self.kind = "nop"; self.nstates = int(ops[0], 0) + 1
        elif base in MFMA_INFO:
            self.kind = "mfma"; self.w = R(ops[:1]); self.srcAB = R(ops[1:3]); self.srcC = R(ops[3:4]); self.r = self.srcAB | self.srcC
            self.mclass, self.passes = MFMA_INFO[base]
        elif base.startswith("v_cmp"):
            self.kind = "valu"; self.w = R(ops[:1]); self.r = R(ops[1:])
        elif base in ("v_readfirstlane_b32", "v_readlane_b32"):
            self.kind = "valu"; self.w = R(ops[:1]); self.r = R(ops[1:])
        elif base.startswith("v_permlane") and base.endswith("swap_b32"):
            self.kind = "valu"; self.w = R(ops[:2]); self.r = R(ops[:2])
        elif base in ("v_add_co_u32","v_sub_co_u32","v_addc_co_u32","v_subb_co_u32","v_subrev_co_u32"):
            self.kind = "valu"; self.w = R(ops[:2]); self.r = R(ops[2:])
        elif base.startswith("v_"):
            self.kind = "valu"; self.w = R(ops[:1]); self.r = R(ops[1:])
            if base in ("v_fmac_f32","v_pk_fmac_f16","v_dot2c_f32_bf16","v_writelane_b32") or self.dpp: self.r |= self.w
        elif base.startswith("buffer_load") or base.startswith("global_load"):
            self.kind = "vmem"
            if "lds" in mods or "_lds_" in base: self.r = R(ops)
            else:
                self.w = R(ops[:1]); self.r = R(ops[1:])
                if "d16" in base: self.r |= self.w
        elif base.startswith("buffer_store") or base.startswith("global_store") or base.startswith("buffer_atomic") or base.startswith("global_atomic"):
            self.kind = "vmem"; self.r = R(ops)
            if base.endswith("x4") or base.endswith("x3"):
                self.widestore = R(ops[:1]) if base.startswith("buffer") else R(ops[1:2])
        elif base.startswith("ds_read") or base.startswith("ds_bpermute") or base.startswith("ds_swizzle") or base.startswith("ds_permute"):
            self.kind = "ds"; self.w = R(ops[:1]); self.r = R(ops[1:])
        elif base.startswith("ds_"):
            self.kind = "ds"; self.r = R(ops)
        elif base.startswith("s_"):
            self.kind = "salu"
            if base.startswith(("s_cmp","s_waitcnt","s_barrier","s_branch","s_cbranch","s_endpgm","s_setprio","s_sleep")):
                self.r = R(ops)
            else:
                self.w = R(ops[:1]); self.r = R(ops[1:])
                if "saveexec" in base: self.w |= regs_of("exec")
        self.trans = base in TRANS

def need(p, c):
    n = 0
    vw = {x for x in p.w if x[0] in "va"}; sw = {x for x in p.w if x[0] == "s"}
    if p.kind == "valu":
        if c.kind == "mfma" and vw & c.r: n = max(n, 2)
        if p.trans and c.kind == "valu" and not c.trans and vw & c.r: n = max(n, 1)
        if p.trans and c.kind in ("vmem","ds") and vw & c.r: n = max(n, 1)
        if sw:
            if c.kind == "valu" and sw & c.r:
                n = max(n, 4 if c.base in ("v_readlane_b32","v_writelane_b32") else 2)
            if c.kind == "vmem" and sw & c.r: n = max(n, 5)
            if c.kind == "salu" and sw & c.r: n = max(n, 1)
        if c.kind == "valu" and vw & c.r:
            if c.dpp or c.base.startswith("v_permlane"): n = max(n, 2)
            if c.base in ("v_readfirstlane_b32","v_readlane_b32"): n = max(n, 1)
    if p.kind == "salu":
        if ("s",124) in p.w and c.kind == "vmem" and ("lds" in getattr(c,"mods",[]) or "_lds_" in c.base): n = max(n, 1)
        if p.w & regs_of("exec") and c.kind == "valu" and c.dpp: n = max(n, 0)
    if p.kind == "mfma":
        i = IDX[p.passes]
        full = (5,8,12,20)[i] if p.mclass == "xdl" else (4,6,10,18)[i]
        if c.kind == "mfma":
            if p.w & c.srcAB: n = max(n, full)
            if p.w & c.srcC:
                if c.srcC == p.w and c.base == p.base: n = max(n, 2 if p.passes == 2 else 0)
                else: n = max(n, (4,6,10,18)[i])
            elif p.w & c.w: n = max(n, full)
        elif c.kind in ("valu","vmem","ds"):
            if p.w & (c.r | c.w): n = max(n, full)
        if p.mclass == "xdl" and c.kind == "valu" and p.srcC & c.w: n = max(n, (1,3,7,15)[i])
    if p.widestore:
        if c.kind == "valu" and p.widestore & c.w: n = max(n, 2)
        elif p.widestore & c.w: n = max(n, 1)
    return n

class Asm:
    def __init__(self): self.lines = []
    def __call__(self, text):
        for ln in text.strip("\n").split("\n"):
            if ln.strip(): self.lines.append(ln.strip())
    def raw(self, text): self.lines.append(text)
    def finalize(self):
        out = []
        for ln in self.lines:
            ins = Ins(ln)
            if ins.kind in ("label","dir") or not ins.mn:
                out.append(ins); continue
            dist = 0; req = 0
            for p in reversed(out):
                if p.kind in ("label","dir"): continue
                if dist >= 24: break
                k = need(p, ins)
                if k > dist: req = max(req, k - dist)
                dist += p.nstates
            while req > 0:
                k = min(req, 16)
                out.append(Ins(f"s_nop {k-1}")); req -= k
            out.append(ins)
        txt = []
        for i in out:
            if i.kind in ("label","dir"): txt.append(i.text)
            else: txt.append("    " + i.text)
        return "\n".join(txt) + "\n"
```

```python
from gen import *
from gen_k2 import *
from gen_k3 import *
from gen_k45 import *
from gen_k1 import gen_k1, K1_LDS
ALL = [("k1_kernel", gen_k1, 256, 640, K1_LDS),
       ("k2_kernel", gen_k2, 224, 512, K2_LDS),
       ("k3_kernel", gen_k3, 256, 448, 768),
       ("k4_kernel", gen_k4, 112, 448, 256+7*2048),
       ("k5_kernel", gen_k5, 56, 256, 1024)]
```

```python
from gen import *

class DSQ:
    def __init__(self, a): self.a = a; self.q = []
    def issue(self, text, tag): self.a(text); self.q.append(tag)
    def wait(self, tag):
        if tag not in self.q: return
        i = len(self.q) - 1 - self.q[::-1].index(tag)
        n = len(self.q) - 1 - i
        self.a(f"s_waitcnt lgkmcnt({min(n,15)})")
        self.q = self.q[i+1:] if n <= 15 else self.q[len(self.q)-15:]
    def drain(self): self.a("s_waitcnt lgkmcnt(0)"); self.q = []

UCS = 4384; UCD = 8*UCS; KH = 2*UCD; KHD = 8704; K2_LDS = KH + 2*KHD

def gen_k2():
    a = Asm()
    a(f"""s_cmp_ge_u32 s2, 224
s_cbranch_scc1 K2_end
s_load_dwordx2 s[4:5], s[0:1], {KA['ws']}
s_load_dwordx2 s[6:7], s[0:1], {KA['dsk']}
v_lshlrev_b32 v1, 4, v0
v_cmp_gt_u32 vcc, 2, v0
v_cndmask_b32 v2, v1, -1, vcc
v_cmp_gt_u32 vcc, 1, v0
v_cndmask_b32 v3, v1, -1, vcc
v_bfrev_b32 v4, 1
v_cndmask_b32 v3, v1, v4, vcc
v_cmp_gt_u32 vcc, 2, v0
v_cndmask_b32 v2, v1, v4, vcc
s_lshl_b32 s20, s2, 13
s_lshl_b32 s21, s2, 2
s_mul_i32 s22, s2, {2*KC_STRIDE}
s_waitcnt lgkmcnt(0)
s_add_u32 s8, s4, s20
s_addc_u32 s9, s5, 0
s_add_u32 s8, s8, {WS_XNT-32}
s_addc_u32 s9, s9, 0
s_mov_b32 s10, 8224
s_mov_b32 s11, 0x00020000
buffer_load_dwordx4 v[16:19], v2, s[8:11], 0 offen
buffer_load_dwordx4 v[20:23], v3, s[8:11], 0 offen offset:16
buffer_load_dwordx4 v[24:27], v1, s[8:11], 0 offen offset:32
s_add_u32 s12, s4, s22
s_addc_u32 s13, s5, 0
s_add_u32 s12, s12, {WS_KC}
s_addc_u32 s13, s13, 0
s_mov_b32 s14, {2*KC_STRIDE}
s_mov_b32 s15, 0x00020000
s_add_u32 s24, s4, s21
s_addc_u32 s25, s5, 0
s_load_dword s28, s[24:25], {WS_MOD}
s_load_dword s29, s[24:25], {WS_MOD+896}
s_add_u32 s26, s6, s21
s_addc_u32 s27, s7, 0
s_load_dword s30, s[26:27], 0
s_add_u32 s16, s4, s20
s_addc_u32 s17, s5, 0
s_add_u32 s16, s16, {WS_YYT}
s_addc_u32 s17, s17, 0
s_mov_b32 s18, 8192
s_mov_b32 s19, 0x00020000
v_and_b32 v5, 255, v0
v_lshrrev_b32 v6, 8, v0
v_mul_u32_u24 v7, {KC_STRIDE}, v6
v_lshlrev_b32 v8, 3, v5""")
    for e in range(0, 8, 2):
        a(f"""v_add_u32 v9, {e}, v8
v_add_u32 v10, {e+1}, v8
v_cvt_f32_u32 v11, v9
v_cvt_f32_u32 v12, v10
v_cvt_pk_bf16_f32 v11, v11, v12
v_lshrrev_b32 v12, 16, v11
v_and_b32 v11, 0xffff, v11
v_subrev_u32 v11, 17024, v11
v_subrev_u32 v12, 17024, v12
v_cmp_gt_u32 vcc, 128, v8
v_cndmask_b32 v11, v11, v9, vcc
v_cndmask_b32 v12, v12, v10, vcc
v_lshl_add_u32 v11, v11, 2, v7
v_lshl_add_u32 v12, v12, 2, v7
buffer_load_dword v{28+e}, v11, s[12:15], 0 offen
buffer_load_dword v{29+e}, v12, s[12:15], 0 offen""")
    a(f"""v_mov_b32 v36, 0
v_mov_b32 v37, 0
v_mov_b32 v38, 0
v_mov_b32 v39, 0
v_lshrrev_b32 v9, 4, v0
v_mul_u32_u24 v9, {UCS}, v9
v_and_b32 v10, 15, v0
v_lshl_add_u32 v9, v10, 4, v9
v_cmp_gt_u32 vcc, 256, v0
s_and_saveexec_b64 s[32:33], vcc
ds_write_b128 v9, v[36:39] offset:4096
s_mov_b64 exec, s[32:33]
v_mul_u32_u24 v9, {KHD}, v6
v_lshl_add_u32 v9, v5, 4, v9
v_add_u32 v9, {KH}, v9
v_cmp_gt_u32 vcc, 15, v5
s_and_saveexec_b64 s[32:33], vcc
ds_write_b128 v9, v[36:39]
ds_write_b128 v9, v[36:39] offset:4352
s_mov_b64 exec, s[32:33]
s_waitcnt lgkmcnt(0)""")
    a(f"""s_lshl_b32 s31, s29, 16
s_and_b32 s29, s29, 0xffff0000
v_add_f32 v40, 1.0, s31
v_add_f32 v41, 1.0, s29
v_cvt_pk_bf16_f32 v40, v40, v41
v_and_b32 v41, 0xffff0000, v40
v_lshlrev_b32 v40, 16, v40
s_lshl_b32 s31, s28, 16
s_and_b32 s28, s28, 0xffff0000
v_mov_b32 v42, s31
v_mov_b32 v43, s28
v_cmp_le_u32 vcc, 1, v0
v_cndmask_b32 v44, 0, v42, vcc
v_cndmask_b32 v45, 0, v43, vcc
v_cmp_le_u32 vcc, 2, v0
v_cndmask_b32 v46, 0, v42, vcc
v_cndmask_b32 v47, 0, v43, vcc
s_lshl_b32 s31, s30, 16
s_and_b32 s30, s30, 0xffff0000
v_mov_b32 v48, s31
v_mov_b32 v49, s30
s_waitcnt vmcnt(8)""")
    H = 52
    for tau in range(1, 12):
        src = 16 + tau; e = H + 2*tau
        sa = (46, 44, 42)[tau // 4]
        a(f"""v_lshlrev_b32 v{e}, 16, v{src}
v_and_b32 v{e+1}, 0xffff0000, v{src}
v_pk_mul_f32 v[{e}:{e+1}], v[{e}:{e+1}], v[40:41]
v_cvt_pk_bf16_f32 v{e}, v{e}, v{e+1}
v_and_b32 v{e+1}, 0xffff0000, v{e}
v_lshlrev_b32 v{e}, 16, v{e}
v_pk_add_f32 v[{e}:{e+1}], v[{e}:{e+1}], v[{sa}:{sa+1}]""")
    a(f"""v_and_b32 v9, 1, v0
v_sub_u32 v9, 1, v9
v_mul_u32_u24 v9, {4*UCS}, v9
v_lshrrev_b32 v10, 1, v0
v_sub_u32 v10, 255, v10
v_lshl_add_u32 v9, v10, 4, v9""")
    W = 80
    for d in range(2):
        for sg in range(4):
            q = W + 16*d + 4*sg
            for k in range(4):
                m = sg + 2*k
                a(f"v_cvt_pk_bf16_f32 v{q+k}, v{H+2*(11-m)+d}, v{H+2*(10-m)+d}")
            a(f"ds_write_b128 v9, v[{q}:{q+3}] offset:{sg*UCS + d*UCD}")
    for k in range(4):
        e = H + 2*(8+k); o = 144 + 2*k
        a(f"""v_cvt_pk_bf16_f32 v{o}, v{e}, v{e+1}
v_and_b32 v{o+1}, 0xffff0000, v{o}
v_lshlrev_b32 v{o}, 16, v{o}
v_pk_mul_f32 v[{o}:{o+1}], v[{o}:{o+1}], v[48:49]
v_cvt_pk_bf16_f32 v{o}, v{o}, v{o+1}
v_and_b32 v{o+1}, 0xffff0000, v{o}
v_lshlrev_b32 v{o}, 16, v{o}""")
    a("s_waitcnt vmcnt(0)")
    for k in range(4):
        e = 28 + 2*k
        a(f"""v_cvt_pk_bf16_f32 v{112+k}, v{e}, v{e+1}
v_lshlrev_b32 v120, 16, v{112+k}
v_and_b32 v121, 0xffff0000, v{112+k}
v_pk_add_f32 v[{e}:{e+1}], v[{e}:{e+1}], v[120:121] neg_lo:[0,1] neg_hi:[0,1]
v_cvt_pk_bf16_f32 v{116+k}, v{e}, v{e+1}""")
    a(f"""v_mul_u32_u24 v9, {KHD}, v6
v_lshl_add_u32 v9, v5, 4, v9
v_add_u32 v9, {KH+240}, v9
ds_write_b128 v9, v[112:115]
ds_write_b128 v9, v[116:119] offset:4352""")
    a(f"""v_and_b32 v1, 63, v0
v_lshrrev_b32 v2, 6, v0
v_and_b32 v3, 3, v2
v_lshrrev_b32 v4, 4, v1
v_and_b32 v5, 7, v1
v_bfe_u32 v7, v1, 3, 1
v_sub_u32 v8, 7, v5
v_mul_u32_u24 v8, {UCS}, v8
v_mul_u32_u24 v9, {UCD}, v6
v_add_u32 v8, v8, v9
v_lshl_add_u32 v8, v4, 4, v8
v_lshlrev_b32 v9, 8, v7
v_sub_u32 v8, v8, v9
v_lshl_add_u32 v8, v3, 7, v8
v_add_u32 v8, 256, v8
v_and_b32 v10, 15, v1
v_add_u32 v11, v10, v4
v_mul_u32_u24 v9, {KHD}, v6
v_lshl_add_u32 v9, v11, 4, v9
v_lshl_add_u32 v9, v3, 7, v9
v_add_u32 v9, {KH}, v9""")
    ACC = 112
    for r in range(32): a(f"v_mov_b32 v{ACC+r}, 0")
    a("s_waitcnt lgkmcnt(0)\ns_barrier")
    dq = DSQ(a)
    AF = (16, 48); BF = 80
    def rdA(e, b1):
        r = AF[e] + 4*b1
        dq.issue(f"ds_read_b128 v[{r}:{r+3}], v8 offset:{64*e + 512*(7-b1)}", ("A", e, b1))
    def rdB(e, k1):
        r = BF + 8*((e*8+k1) % 3)
        dq.issue(f"ds_read_b128 v[{r}:{r+3}], v9 offset:{64*e + 512*k1}", ("Bh", e, k1))
        dq.issue(f"ds_read_b128 v[{r+4}:{r+7}], v9 offset:{64*e + 512*k1 + 4352}", ("Bl", e, k1))
    rdB(0, 0)
    for b1 in range(8): rdA(0, b1)
    rdB(0, 1)
    seq = [(e, k1) for e in range(2) for k1 in range(8)]
    for si, (e, k1) in enumerate(seq):
        r = BF + 8*(si % 3)
        if si + 2 < len(seq): rdB(*seq[si+2])
        if e == 0: rdA(1, k1)
        dq.wait(("Bl", e, k1))
        for b1 in range(8 - k1):
            dq.wait(("A", e, b1))
            t = k1 + b1; c = ACC + 4*t; ar = AF[e] + 4*b1
            a(f"v_mfma_f32_16x16x32_bf16 v[{c}:{c+3}], v[{ar}:{ar+3}], v[{r}:{r+3}], v[{c}:{c+3}]")
            a(f"v_mfma_f32_16x16x32_bf16 v[{c}:{c+3}], v[{ar}:{ar+3}], v[{r+4}:{r+7}], v[{c}:{c+3}]")
    a(f"""v_lshlrev_b32 v8, 15, v6
v_lshl_add_u32 v8, v3, 13, v8
v_lshl_add_u32 v8, v10, 5, v8
v_lshrrev_b32 v9, 1, v4
v_lshl_add_u32 v8, v9, 9, v8
v_and_b32 v9, 1, v4
v_lshl_add_u32 v8, v9, 4, v8
s_waitcnt lgkmcnt(0)
s_barrier""")
    for t in range(8):
        a(f"ds_write_b128 v8, v[{ACC+4*t}:{ACC+4*t+3}] offset:{1024*t}")
    a("v_lshlrev_b32 v1, 4, v0\ns_waitcnt lgkmcnt(0)\ns_barrier")
    for d in range(2):
        for q in range(4):
            r = 16 + 16*d + 4*q
            a(f"ds_read_b128 v[{r}:{r+3}], v1 offset:{32768*d + 8192*q}")
    a("s_waitcnt lgkmcnt(0)")
    for d in range(2):
        for k in range(4):
            r = 16 + 16*d + k
            a(f"v_add_f32 v{r}, v{r}, v{r+4}\nv_add_f32 v{r+8}, v{r+8}, v{r+12}\nv_add_f32 v{r}, v{r}, v{r+8}")
    for k in range(4):
        o = 144 + 2*k
        a(f"""v_cvt_pk_bf16_f32 v50, v{16+k}, v{32+k}
v_and_b32 v51, 0xffff0000, v50
v_lshlrev_b32 v50, 16, v50
v_pk_add_f32 v[50:51], v[50:51], v[{o}:{o+1}]
v_cvt_pk_bf16_f32 v{52+k}, v50, v51""")
    a("""buffer_store_dwordx4 v[52:55], v1, s[16:19], 0 offen
K2_end:
s_endpgm""")
    return a.finalize(), 152
```

```python
from gen import *

def unpack(a, lo, hi, src):
    a(f"v_lshlrev_b32 v{lo}, 16, v{src}\nv_and_b32 v{hi}, 0xffff0000, v{src}")
def rnd_pair(a, e):
    a(f"v_cvt_pk_bf16_f32 v{e}, v{e}, v{e+1}\nv_and_b32 v{e+1}, 0xffff0000, v{e}\nv_lshlrev_b32 v{e}, 16, v{e}")

def gen_k3():
    a = Asm()
    a(f"""s_cmp_ge_u32 s2, 256
s_cbranch_scc1 K3_end
s_load_dwordx2 s[4:5], s[0:1], {KA['ws']}
s_load_dwordx2 s[6:7], s[0:1], {KA['x']}
s_load_dwordx2 s[8:9], s[0:1], {KA['wr']}
s_load_dwordx2 s[10:11], s[0:1], {KA['out']}
v_and_b32 v1, 7, v0
v_bfe_u32 v2, v0, 3, 3
v_lshrrev_b32 v3, 6, v0
v_lshl_add_u32 v4, v3, 3, v1
s_lshl_b32 s12, s2, 3
v_add_u32 v5, s12, v2
s_movk_i32 s13, 896
v_mul_lo_u32 v6, v5, s13
v_lshl_add_u32 v6, v4, 4, v6
v_lshlrev_b32 v7, 15, v4
v_lshl_add_u32 v7, v5, 2, v7
v_lshlrev_b32 v8, 4, v4
s_waitcnt lgkmcnt(0)""")
    srd(a, 16, 6, XSZ)
    srd(a, 20, 4, XSZ, WS_YYT)
    srd(a, 24, 4, 5376, WS_MOD)
    srd(a, 28, 8, 896)
    srd(a, 32, 10, XSZ)
    srd(a, 36, 4, XSZ, WS_X1)
    srd(a, 40, 4, 0x6000, WS_R)
    a("buffer_load_dwordx4 v[12:15], v6, s[16:19], 0 offen")
    for q in range(4):
        a(f"s_mov_b32 s14, {8192*q}\nbuffer_load_dword v{16+q}, v7, s[20:23], s14 offen")
    a(f"""buffer_load_dwordx4 v[20:23], v8, s[24:27], 0 offen offset:1792
buffer_load_dwordx4 v[24:27], v8, s[24:27], 0 offen offset:3584
buffer_load_dwordx4 v[28:31], v8, s[24:27], 0 offen offset:2688
s_movk_i32 s14, 4480
buffer_load_dwordx4 v[32:35], v8, s[24:27], s14 offen
buffer_load_dwordx4 v[36:39], v8, s[28:31], 0 offen
s_mov_b32 s44, {f2u(1.0/64)}
s_mov_b32 s45, {f2u(1.0/7)}
s_mov_b32 s46, {f2u(64.0)}
s_mov_b32 s47, {f2u(1.0/448)}
s_mov_b32 s48, {f2u(1e-5)}
v_lshlrev_b32 v9, 6, v2
v_lshl_add_u32 v10, v3, 3, v9
s_waitcnt vmcnt(4)""")
    X = 40
    for q in range(4):
        e = X + 2*q
        unpack(a, e, e+1, 16+q)
        unpack(a, 60, 61, 20+q)
        a(f"v_pk_mul_f32 v[{e}:{e+1}], v[{e}:{e+1}], v[60:61]")
        rnd_pair(a, e)
        unpack(a, 60, 61, 12+q)
        a(f"v_pk_add_f32 v[{e}:{e+1}], v[{e}:{e+1}], v[60:61]")
        a(f"v_cvt_pk_bf16_f32 v{48+q}, v{e}, v{e+1}")
        unpack(a, e, e+1, 48+q)
    a("buffer_store_dwordx4 v[48:51], v6, s[36:39], 0 offen")
    a(f"""v_add_f32 v52, v40, v41
v_add_f32 v53, v42, v43
v_add_f32 v54, v44, v45
v_add_f32 v55, v46, v47
v_add_f32 v52, v52, v53
v_add_f32 v54, v54, v55
v_add_f32 v52, v52, v54""")
    sum8lanes(a, 52, 53)
    a("v_mul_f32 v52, s44, v52")
    a("v_sub_f32 v54, v40, v52\nv_mul_f32 v53, v54, v54")
    for i in range(1, 8):
        a(f"v_sub_f32 v54, v{40+i}, v52\nv_fmac_f32 v53, v54, v54")
    sum8lanes(a, 53, 54)
    a(f"""ds_write_b64 v10, v[52:53]
s_waitcnt lgkmcnt(0)
s_barrier
ds_read_b128 v[64:67], v9
ds_read_b128 v[68:71], v9 offset:16
ds_read_b128 v[72:75], v9 offset:32
ds_read_b64 v[76:77], v9 offset:48""")
    a("s_waitcnt vmcnt(1)")
    for q in range(4):
        e = 80 + 2*q
        unpack(a, e, e+1, 24+q)
        a(f"v_pk_add_f32 v[{e}:{e+1}], v[{e}:{e+1}], 1.0 op_sel_hi:[1,0]")
        rnd_pair(a, e)
        unpack(a, 88+2*q, 89+2*q, 28+q)
    a(f"""s_waitcnt lgkmcnt(0)
v_add_f32 v52, v64, v66
v_add_f32 v53, v68, v70
v_add_f32 v54, v72, v74
v_add_f32 v52, v52, v76
v_add_f32 v52, v52, v53
v_add_f32 v52, v52, v54
v_mul_f32 v52, s45, v52
v_add_f32 v53, v65, v67
v_add_f32 v54, v69, v71
v_add_f32 v55, v73, v75
v_add_f32 v53, v53, v77
v_add_f32 v53, v53, v54
v_add_f32 v53, v53, v55
v_sub_f32 v55, v64, v52
v_mul_f32 v54, v55, v55""")
    for i in range(1, 7):
        a(f"v_sub_f32 v55, v{64+2*i}, v52\nv_fmac_f32 v54, v55, v55")
    a("v_fmac_f32 v53, s46, v54\nv_mul_f32 v53, s47, v53")
    bf16r(a, 56, 52)
    bf16r(a, 53, 53)
    a("v_add_f32 v53, s48, v53")
    bf16r(a, 53, 53)
    a("v_sqrt_f32 v53, v53")
    bf16r(a, 53, 53)
    a("v_rcp_f32 v57, v53\nv_mov_b32 v58, v56\nv_mov_b32 v59, v57")
    a("v_mov_b32 v100, v56\nv_mov_b32 v101, v56\nv_mov_b32 v102, v57\nv_mov_b32 v103, v57")
    for q in range(4):
        e = 104 + 2*q; x = X + 2*q
        a(f"v_pk_add_f32 v[{e}:{e+1}], v[{x}:{x+1}], v[100:101] neg_lo:[0,1] neg_hi:[0,1]")
        rnd_pair(a, e)
        a(f"v_pk_mul_f32 v[{e}:{e+1}], v[{e}:{e+1}], v[102:103]")
        rnd_pair(a, e)
        a(f"v_pk_mul_f32 v[{e}:{e+1}], v[{e}:{e+1}], v[{80+2*q}:{81+2*q}]")
        rnd_pair(a, e)
        a(f"v_pk_add_f32 v[{e}:{e+1}], v[{e}:{e+1}], v[{88+2*q}:{89+2*q}]")
        rnd_pair(a, e)
        unpack(a, 60, 61, 36+q)
        if q == 0: a(f"v_mul_f32 v62, v{e}, v60\nv_mul_f32 v63, v{e+1}, v61")
        else: a(f"v_fmac_f32 v62, v{e}, v60\nv_fmac_f32 v63, v{e+1}, v61")
        unpack(a, 60, 61, 32+q)
        a(f"v_pk_mul_f32 v[60:61], v[60:61], v[{e}:{e+1}]")
        rnd_pair(a, 60)
        a(f"v_pk_add_f32 v[60:61], v[60:61], v[{x}:{x+1}]")
        a(f"v_cvt_pk_bf16_f32 v{112+q}, v60, v61")
    a("buffer_store_dwordx4 v[112:115], v6, s[32:35], 0 offen")
    a("v_add_f32 v62, v62, v63")
    sum8lanes(a, 62, 63)
    a(f"""v_lshlrev_b32 v9, 5, v2
v_lshl_add_u32 v10, v3, 2, v9
ds_write_b32 v10, v62 offset:512
s_waitcnt lgkmcnt(0)
s_barrier
v_cmp_gt_u32 vcc, 64, v0
s_and_saveexec_b64 s[50:51], vcc
s_cbranch_execz K3_end
ds_read_b128 v[64:67], v9 offset:512
ds_read_b96 v[68:70], v9 offset:528
v_cmp_eq_u32 vcc, 0, v1
v_lshlrev_b32 v11, 2, v5
v_lshlrev_b32 v12, 3, v5
v_bfrev_b32 v13, 1
v_cndmask_b32 v11, v13, v11, vcc
v_cndmask_b32 v12, v13, v12, vcc
s_movk_i32 s14, 0x2000
s_waitcnt lgkmcnt(0)
v_add_f32 v64, v64, v65
v_add_f32 v66, v66, v67
v_add_f32 v68, v68, v69
v_add_f32 v64, v64, v66
v_add_f32 v68, v68, v70
v_add_f32 v64, v64, v68""")
    bf16r(a, 64, 64)
    a(f"""buffer_store_dword v64, v11, s[40:43], 0 offen
buffer_store_dwordx2 v[58:59], v12, s[40:43], s14 offen
K3_end:
s_endpgm""")
    return a.finalize(), 116
```

```python
from gen import *
from gen_k3 import unpack, rnd_pair

class Pool:
    def __init__(self, regs): self.free = list(regs)
    def get(self): return self.free.pop(0)
    def put(self, r): self.free.append(r)

def CE(a, L, i, j, pool):
    hi = pool.get()
    a(f"v_max_u32 v{hi}, v{L[i]}, v{L[j]}\nv_min_u32 v{L[j]}, v{L[i]}, v{L[j]}")
    pool.put(L[i]); L[i] = hi

SORT8 = [(0,1),(2,3),(4,5),(6,7),(0,2),(1,3),(4,6),(5,7),(1,2),(5,6),(0,4),(3,7),(1,5),(2,6),(1,4),(3,6),(2,4),(3,5),(3,4)]
def bitonic_fix(a, L, pool):
    for (i, j) in [(0,4),(1,5),(2,6),(3,7),(0,2),(1,3),(4,6),(5,7),(0,1),(2,3),(4,5),(6,7)]:
        CE(a, L, i, j, pool)
def merge_dpp(a, L, pool, dpp, fix=True):
    N = [pool.get() for _ in range(8)]
    for i in range(8):
        a(f"v_max_u32 v{N[i]}, v{L[7-i]}, v{L[i]} {dpp}")
    for r in L: pool.put(r)
    L[:] = N
    if fix: bitonic_fix(a, L, pool)

def silu_inplace(a, v, t, s_nl2e):
    a(f"""v_mul_f32 v{t}, s{s_nl2e}, v{v}
v_exp_f32 v{t}, v{t}
v_add_f32 v{t}, 1.0, v{t}
v_rcp_f32 v{t}, v{t}
v_mul_f32 v{v}, v{v}, v{t}""")

def gen_k4():
    a = Asm()
    a(f"""s_cmp_ge_u32 s2, 112
s_cbranch_scc1 K4_end
s_load_dwordx2 s[4:5], s[0:1], {KA['ws']}
s_load_dwordx4 s[8:11], s[0:1], {KA['wg']}
v_and_b32 v1, 63, v0
v_and_b32 v2, 15, v1
v_lshrrev_b32 v3, 4, v1
v_lshrrev_b32 v4, 6, v0
v_readfirstlane_b32 s3, v4
v_lshlrev_b32 v5, 5, v0
s_lshl_b32 s12, s2, 5
v_lshlrev_b32 v6, 3, v4
v_add_u32 v6, v6, v3
s_movk_i32 s13, {8*3584}
v_mul_lo_u32 v6, v6, s13
v_lshl_add_u32 v6, v2, 1, v6
v_add_u32 v6, s12, v6
s_waitcnt lgkmcnt(0)""")
    srd(a, 16, 4, 0x6000, WS_R)
    srd(a, 20, 8, 448*3584)
    srd(a, 24, 10, 448*3584)
    srd(a, 28, 4, 5376, WS_MOD)
    srd(a, 32, 4, XSZ, WS_X1)
    srd(a, 36, 4, 8*1792*2, WS_ACT)
    srd(a, 40, 4, 256, WS_SEL)
    a("""s_cmp_ge_u32 s3, 4
s_cbranch_scc1 K4_noR
buffer_load_dwordx4 v[8:11], v5, s[16:19], 0 offen
buffer_load_dwordx4 v[12:15], v5, s[16:19], 0 offen offset:16
K4_noR:""")
    for mat in range(2):
        for s in range(2):
            for jj in range(8):
                r = 128 + 16*mat + 8*s + jj
                a(f"s_mov_b32 s14, {(32*s+jj)*3584}\nbuffer_load_ushort v{r}, v6, s[{20+4*mat}:{23+4*mat}], s14 offen")
    a(f"""v_lshlrev_b32 v7, 7, v4
v_lshl_add_u32 v7, v3, 4, v7
buffer_load_dwordx4 v[80:83], v7, s[28:31], 0 offen offset:3584
buffer_load_dwordx4 v[84:87], v7, s[28:31], 0 offen offset:3648
buffer_load_dwordx4 v[88:91], v7, s[28:31], 0 offen offset:2688
buffer_load_dwordx4 v[92:95], v7, s[28:31], 0 offen offset:2752
s_cmp_ge_u32 s3, 4
s_cbranch_scc1 K4_bar1
s_waitcnt vmcnt(36)
v_lshlrev_b32 v16, 3, v0
v_sub_u32 v16, 2047, v16""")
    for i in range(8):
        a(f"""v_ashrrev_i32 v17, 31, v{8+i}
v_or_b32 v17, 0x80000000, v17
v_xor_b32 v{8+i}, v{8+i}, v17
v_and_b32 v{8+i}, 0xffff0000, v{8+i}
v_subrev_u32 v17, {i}, v16
v_or_b32 v{8+i}, v{8+i}, v17""")
    L = list(range(8, 16)); pool = Pool(range(18, 40))
    for (i, j) in SORT8: CE(a, L, i, j, pool)
    for dpp in ("quad_perm:[1,0,3,2] row_mask:0xf bank_mask:0xf", "quad_perm:[2,3,0,1] row_mask:0xf bank_mask:0xf",
                "row_half_mirror row_mask:0xf bank_mask:0xf", "row_mirror row_mask:0xf bank_mask:0xf",
                "row_bcast:15 row_mask:0xa bank_mask:0xf", "row_bcast:31 row_mask:0xc bank_mask:0xf"):
        merge_dpp(a, L, pool, dpp)
    a(f"""v_lshlrev_b32 v17, 5, v4
v_cmp_eq_u32 vcc, 63, v1
s_and_saveexec_b64 s[44:45], vcc""")
    for i in range(8):
        a(f"ds_write_b32 v17, v{L[i]} offset:{4*i}")
    a("""s_mov_b64 exec, s[44:45]
s_waitcnt lgkmcnt(0)
K4_bar1:
s_barrier
v_and_b32 v17, 3, v1
v_lshlrev_b32 v17, 5, v17
ds_read_b128 v[8:11], v17
ds_read_b128 v[12:15], v17 offset:16
s_waitcnt lgkmcnt(0)""")
    L = list(range(8, 16)); pool = Pool(range(18, 40))
    merge_dpp(a, L, pool, "quad_perm:[1,0,3,2] row_mask:0xf bank_mask:0xf")
    merge_dpp(a, L, pool, "quad_perm:[2,3,0,1] row_mask:0xf bank_mask:0xf")
    a("""v_and_b32 v16, 1, v1
v_cmp_eq_u32 s[46:47], 1, v16
v_and_b32 v16, 2, v1
v_cmp_eq_u32 s[48:49], 2, v16
v_and_b32 v16, 4, v1
v_cmp_eq_u32 s[50:51], 4, v16""")
    for i in range(4): a(f"v_cndmask_b32 v{40+i}, v{L[2*i]}, v{L[2*i+1]}, s[46:47]")
    a("""v_cndmask_b32 v40, v40, v41, s[48:49]
v_cndmask_b32 v42, v42, v43, s[48:49]
v_cndmask_b32 v40, v40, v42, s[50:51]
v_and_b32 v41, 0x7ff, v40
v_sub_u32 v41, 2047, v41
s_movk_i32 s13, 896
v_mul_lo_u32 v42, v41, s13
v_add_u32 v42, v42, v7
v_lshlrev_b32 v43, 3, v41
s_movk_i32 s14, 0x2000
buffer_load_dwordx4 v[44:47], v42, s[32:35], 0 offen
buffer_load_dwordx4 v[48:51], v42, s[32:35], 0 offen offset:64
buffer_load_dwordx2 v[52:53], v43, s[16:19], s14 offen""")
    a(f"""s_mov_b32 s15, {LOG2E | 0x80000000}
v_and_b32 v54, 0xffff0000, v40
v_ashrrev_i32 v55, 31, v54
v_not_b32 v55, v55
v_or_b32 v55, 0x80000000, v55
v_xor_b32 v54, v54, v55
v_and_b32 v54, 0xffff0000, v54
v_mul_f32 v55, s15, v54
v_exp_f32 v55, v55
v_add_f32 v55, 1.0, v55
v_rcp_f32 v55, v55""")
    bf16r(a, 55, 55)
    a(f"""v_lshlrev_b32 v56, 2, v0
v_bfrev_b32 v57, 1
v_cmp_gt_u32 vcc, 8, v0
v_cndmask_b32 v56, v57, v56, vcc
s_cmp_lg_u32 s2, 0
s_cbranch_scc1 K4_nosel
buffer_store_dword v41, v56, s[40:43], 0 offen
buffer_store_dword v55, v56, s[40:43], 0 offen offset:32
K4_nosel:""")
    a("s_waitcnt vmcnt(3)")
    for q in range(16):
        a(f"v_lshl_or_b32 v{64+q}, v{129+2*q}, 16, v{128+2*q}")
    for q in range(8):
        e = 96 + 2*q
        unpack(a, e, e+1, 80+q)
        a(f"v_pk_add_f32 v[{e}:{e+1}], v[{e}:{e+1}], 1.0 op_sel_hi:[1,0]")
        rnd_pair(a, e)
        unpack(a, 112+2*q, 113+2*q, 88+q)
    a("""s_waitcnt vmcnt(0)
v_mov_b32 v58, v52
v_mov_b32 v59, v52
v_mov_b32 v60, v53
v_mov_b32 v61, v53""")
    for q in range(8):
        unpack(a, 62, 63, 44+q)
        a("v_pk_add_f32 v[62:63], v[62:63], v[58:59] neg_lo:[0,1] neg_hi:[0,1]")
        rnd_pair(a, 62)
        a("v_pk_mul_f32 v[62:63], v[62:63], v[60:61]")
        rnd_pair(a, 62)
        a(f"v_pk_mul_f32 v[62:63], v[62:63], v[{96+2*q}:{97+2*q}]")
        rnd_pair(a, 62)
        a(f"v_pk_add_f32 v[62:63], v[62:63], v[{112+2*q}:{113+2*q}]")
        a(f"v_cvt_pk_bf16_f32 v{44+q}, v62, v63")
    a("""v_mfma_f32_16x16x32_bf16 v[8:11], v[44:47], v[64:67], 0
v_mfma_f32_16x16x32_bf16 v[12:15], v[44:47], v[72:75], 0
v_mfma_f32_16x16x32_bf16 v[8:11], v[48:51], v[68:71], v[8:11]
v_mfma_f32_16x16x32_bf16 v[12:15], v[48:51], v[76:79], v[12:15]
v_lshlrev_b32 v17, 11, v4
v_lshl_add_u32 v17, v1, 4, v17
ds_write_b128 v17, v[8:11] offset:256
ds_write_b128 v17, v[12:15] offset:1280
s_waitcnt lgkmcnt(0)
s_barrier
v_cmp_gt_u32 vcc, 32, v0
s_and_saveexec_b64 s[44:45], vcc
s_cbranch_execz K4_end
v_lshlrev_b32 v17, 4, v0""")
    for m in range(7):
        a(f"ds_read_b128 v[{64+8*m}:{67+8*m}], v17 offset:{256+2048*m}\nds_read_b128 v[{68+8*m}:{71+8*m}], v17 offset:{1280+2048*m}")
    a("s_waitcnt lgkmcnt(0)")
    for k in range(8):
        a(f"""v_add_f32 v{64+k}, v{64+k}, v{72+k}
v_add_f32 v{80+k}, v{80+k}, v{88+k}
v_add_f32 v{96+k}, v{96+k}, v{104+k}
v_add_f32 v{64+k}, v{64+k}, v{112+k}
v_add_f32 v{80+k}, v{80+k}, v{96+k}
v_add_f32 v{64+k}, v{64+k}, v{80+k}""")
    for k in (64, 66, 68, 70): rnd_pair(a, k)
    for j in range(4): silu_inplace(a, 64+j, 72, 15)
    for k in (64, 66): rnd_pair(a, k)
    a("""v_pk_mul_f32 v[64:65], v[64:65], v[68:69]
v_pk_mul_f32 v[66:67], v[66:67], v[70:71]
v_cvt_pk_bf16_f32 v64, v64, v65
v_cvt_pk_bf16_f32 v66, v66, v67
s_movk_i32 s13, 14336
v_mul_lo_u32 v17, v3, s13
v_lshl_add_u32 v17, v2, 1, v17
s_add_u32 s14, s12, 3584
s_add_u32 s13, s12, 7168
s_add_u32 s15, s12, 10752
buffer_store_short v64, v17, s[36:39], s12 offen
buffer_store_short_d16_hi v64, v17, s[36:39], s14 offen
buffer_store_short v66, v17, s[36:39], s13 offen
buffer_store_short_d16_hi v66, v17, s[36:39], s15 offen
K4_end:
s_endpgm""")
    return a.finalize(), 160

NW5 = 14
def gen_k5():
    a = Asm()
    a(f"""s_cmp_ge_u32 s2, 28
s_cbranch_scc1 K5_end
s_load_dwordx2 s[4:5], s[0:1], {KA['ws']}
s_load_dwordx2 s[8:9], s[0:1], {KA['wd']}
s_load_dwordx2 s[10:11], s[0:1], {KA['out']}
v_and_b32 v1, 63, v0
v_and_b32 v2, 15, v1
v_lshrrev_b32 v3, 4, v1
v_lshrrev_b32 v4, 6, v0
s_lshl_b32 s12, s2, 5
v_lshlrev_b32 v6, 4, v4
v_add_u32 v6, v6, v3
s_movk_i32 s13, {8*896}
v_mul_lo_u32 v6, v6, s13
v_lshl_add_u32 v6, v2, 1, v6
v_add_u32 v6, s12, v6
v_and_b32 v7, 7, v1
s_movk_i32 s13, 3584
v_mul_lo_u32 v7, v7, s13
v_lshl_add_u32 v7, v4, 8, v7
v_lshl_add_u32 v7, v3, 4, v7
v_lshlrev_b32 v5, 4, v3
s_waitcnt lgkmcnt(0)""")
    srd(a, 16, 4, 0x6000, WS_R)
    srd(a, 20, 8, 1792*896)
    srd(a, 28, 4, 5376, WS_MOD)
    srd(a, 32, 4, XSZ, WS_X1)
    srd(a, 36, 4, 8*1792*2, WS_ACT)
    srd(a, 40, 4, 256, WS_SEL)
    srd(a, 44, 10, XSZ)
    a("""buffer_load_dwordx4 v[8:11], v5, s[40:43], 0 offen
buffer_load_dwordx4 v[12:15], v5, s[40:43], 0 offen offset:32""")
    for s in range(4):
        a(f"buffer_load_dwordx4 v[{16+4*s}:{19+4*s}], v7, s[36:39], 0 offen offset:{64*s}")
    for s in range(4):
        for jj in range(8):
            r = 80 + 8*s + jj
            a(f"s_mov_b32 s14, {(32*s+jj)*896}\nbuffer_load_ushort v{r}, v6, s[20:23], s14 offen")
    a(f"""v_lshlrev_b32 v48, 1, v2
v_add_u32 v48, s12, v48
buffer_load_ushort v49, v48, s[28:31], 0 offen offset:3584
buffer_load_ushort v50, v48, s[28:31], 0 offen offset:2688
s_movk_i32 s14, 4480
buffer_load_ushort v51, v48, s[28:31], s14 offen
s_movk_i32 s13, 896
s_movk_i32 s15, 0x2000
s_waitcnt vmcnt(39)""")
    for j in range(4):
        a(f"""v_and_b32 v{8+j}, 0x7ff, v{8+j}
v_mul_lo_u32 v{52+j}, v{8+j}, s13
v_add_u32 v{52+j}, v{52+j}, v48
v_lshlrev_b32 v{56+j}, 3, v{8+j}
buffer_load_ushort v{60+j}, v{52+j}, s[32:35], 0 offen
buffer_load_dwordx2 v[{64+2*j}:{65+2*j}], v{56+j}, s[16:19], s15 offen""")
    a("s_waitcnt vmcnt(11)")
    for q in range(16):
        a(f"v_lshl_or_b32 v{32+q}, v{81+2*q}, 16, v{80+2*q}")
    for s in range(4):
        c = "0" if s == 0 else "v[72:75]"
        a(f"v_mfma_f32_16x16x32_bf16 v[72:75], v[{16+4*s}:{19+4*s}], v[{32+4*s}:{35+4*s}], {c}")
    a(f"""v_lshlrev_b32 v17, 10, v4
v_lshl_add_u32 v17, v1, 4, v17
ds_write_b128 v17, v[72:75]
s_waitcnt lgkmcnt(0)
s_barrier
v_cmp_gt_u32 vcc, 32, v0
s_and_saveexec_b64 s[48:49], vcc
s_cbranch_execz K5_end
v_lshlrev_b32 v17, 4, v0""")
    for m in range(NW5):
        a(f"ds_read_b128 v[{72+4*m}:{75+4*m}], v17 offset:{1024*m}")
    a("s_waitcnt lgkmcnt(0)")
    n = NW5
    while n > 1:
        h = n // 2
        for m in range(h):
            for k in range(4): a(f"v_add_f32 v{72+4*m+k}, v{72+4*m+k}, v{72+4*(n-1-m)+k}")
        n = n - h
    rnd_pair(a, 72); rnd_pair(a, 74)
    a("v_pk_mul_f32 v[72:73], v[72:73], v[12:13]\nv_pk_mul_f32 v[74:75], v[74:75], v[14:15]")
    rnd_pair(a, 72); rnd_pair(a, 74)
    a("""s_waitcnt vmcnt(0)
v_lshlrev_b32 v49, 16, v49
v_add_f32 v49, 1.0, v49""")
    bf16r(a, 49, 49)
    a("v_lshlrev_b32 v50, 16, v50\nv_lshlrev_b32 v51, 16, v51")
    for j in range(4):
        x = 60 + j
        a(f"v_lshlrev_b32 v{x}, 16, v{x}\nv_sub_f32 v80, v{x}, v{64+2*j}")
        bf16r(a, 80, 80)
        a(f"v_mul_f32 v80, v80, v{65+2*j}")
        bf16r(a, 80, 80)
        a("v_mul_f32 v80, v80, v49")
        bf16r(a, 80, 80)
        a("v_add_f32 v80, v80, v50")
        bf16r(a, 80, 80)
        a(f"v_add_f32 v80, v80, v{72+j}")
        bf16r(a, 80, 80)
        a("v_mul_f32 v80, v80, v51")
        bf16r(a, 80, 80)
        a(f"v_add_f32 v80, v80, v{x}\nv_cvt_pk_bf16_f32 v{81+j}, v80, v80\nbuffer_store_short v{81+j}, v{52+j}, s[44:47], 0 offen")
    a("K5_end:\ns_endpgm")
    return a.finalize(), 128
```

```python
import sys, struct
sys.path.insert(0, "work")
from asmgen import Asm

NAME = "adaLN_cond__ssm_conv_s4__moe_arch_mod__prompt"
KA = dict(x=0, are=8, aim=16, bre=24, bim=32, cre=40, cim=48, ldt=56, dsk=64, bx=72, wr=80, wg=88, wu=96, wd=104, c=112, wmod=120, out=128, dbg=136, ws=144)
WS_MOD = 0x0000; WS_R = 0x4000; WS_ST2 = 0x6000; WS_ACT = 0xA000; WS_SEL = 0x11000
WS_KC = 0x20000; KC_STRIDE = 2624
WS_XNT = 0x200000; WS_YYT = 0x400000; WS_X1 = 0x600000
XSZ = 2048*448*2
LOG2E = 0x3fb8aa3b
INV2PI = 0x3e22f983
def f2u(f): return struct.unpack("<I", struct.pack("<f", f))[0]

def srd(a, d, ptr_s, size, off=0):
    if off:
        a(f"s_add_u32 s{d}, s{ptr_s}, {off}\ns_addc_u32 s{d+1}, s{ptr_s+1}, 0")
    else:
        a(f"s_mov_b32 s{d}, s{ptr_s}\ns_mov_b32 s{d+1}, s{ptr_s+1}")
    a(f"s_mov_b32 s{d+2}, {size}\ns_mov_b32 s{d+3}, 0x00020000")

def bf16r(a, dst, src):
    a(f"v_cvt_pk_bf16_f32 v{dst}, v{src}, v{src}\nv_and_b32 v{dst}, 0xffff0000, v{dst}")

def kernel_header(name):
    return f".globl {name}\n.p2align 8\n.type {name},@function\n{name}:\n"

def kernel_desc(name, vgpr, sgpr=96):
    acc = (vgpr + 3) // 4 * 4
    return f""".amdhsa_kernel {name}
  .amdhsa_next_free_vgpr {vgpr}
  .amdhsa_next_free_sgpr {sgpr}
  .amdhsa_accum_offset {acc}
  .amdhsa_group_segment_fixed_size 0
  .amdhsa_kernarg_size 152
  .amdhsa_user_sgpr_count 2
  .amdhsa_user_sgpr_kernarg_segment_ptr 1
  .amdhsa_system_sgpr_workgroup_id_x 1
  .amdhsa_float_denorm_mode_32 3
  .amdhsa_float_denorm_mode_16_64 3
.end_amdhsa_kernel
"""

def sum8lanes(a, v, tmp):
    a(f"""v_add_f32 v{v}, v{v}, v{v} quad_perm:[1,0,3,2] row_mask:0xf bank_mask:0xf
v_add_f32 v{v}, v{v}, v{v} quad_perm:[2,3,0,1] row_mask:0xf bank_mask:0xf
v_add_f32 v{v}, v{v}, v{v} row_half_mirror row_mask:0xf bank_mask:0xf""")

def ln_stats(a, X, n, vm, vrs, t0, t1, t2, t3, s_inv, s_eps):
    T = [t0, t1, t2, t3]
    for i in range(4): a(f"v_add_f32 v{T[i]}, v{X+i}, v{X+i+4}")
    for i in range(8, n): a(f"v_add_f32 v{T[i%4]}, v{T[i%4]}, v{X+i}")
    a(f"v_add_f32 v{t0}, v{t0}, v{t1}\nv_add_f32 v{t2}, v{t2}, v{t3}\nv_add_f32 v{t0}, v{t0}, v{t2}")
    sum8lanes(a, t0, t1)
    a(f"v_mul_f32 v{vrs}, s{s_inv}, v{t0}")
    for i in range(4):
        a(f"v_sub_f32 v{vm}, v{X+i}, v{vrs}\nv_mul_f32 v{T[i]}, v{vm}, v{vm}")
    for i in range(4, n):
        a(f"v_sub_f32 v{vm}, v{X+i}, v{vrs}\nv_fmac_f32 v{T[i%4]}, v{vm}, v{vm}")
    a(f"v_add_f32 v{t0}, v{t0}, v{t1}\nv_add_f32 v{t2}, v{t2}, v{t3}\nv_add_f32 v{t0}, v{t0}, v{t2}")
    sum8lanes(a, t0, t1)
    bf16r(a, vm, vrs)
    a(f"v_mul_f32 v{t0}, s{s_inv}, v{t0}")
    bf16r(a, t0, t0)
    a(f"v_add_f32 v{t0}, s{s_eps}, v{t0}")
    bf16r(a, t0, t0)
    a(f"v_sqrt_f32 v{t0}, v{t0}")
    bf16r(a, t0, t0)
    a(f"v_rcp_f32 v{vrs}, v{t0}")

N_KG, N_LN, N_MOD = 448, 64, 84
def gen_k1():
    a = Asm()
    a(f"""s_cmp_ge_u32 s2, {N_KG+N_LN+N_MOD}
s_cbranch_scc1 K1_end
s_load_dwordx2 s[4:5], s[0:1], {KA['ws']}
s_cmp_ge_u32 s2, {N_KG+N_LN}
s_cbranch_scc1 K1_mod
s_cmp_ge_u32 s2, {N_KG}
s_cbranch_scc1 K1_ln""")
    a(f"""s_load_dwordx4 s[8:11], s[0:1], {KA['are']}
s_load_dwordx4 s[12:15], s[0:1], {KA['bre']}
s_load_dwordx4 s[16:19], s[0:1], {KA['cre']}
s_load_dwordx2 s[20:21], s[0:1], {KA['ldt']}
v_and_b32 v1, 63, v0
v_and_b32 v2, 15, v1
v_lshrrev_b32 v3, 4, v1
v_lshrrev_b32 v4, 6, v0
s_lshl_b32 s22, s2, 9
v_lshlrev_b32 v5, 7, v4
v_lshl_add_u32 v5, v3, 5, v5
v_add_u32 v5, s22, v5
s_waitcnt lgkmcnt(0)""")
    for k in range(6):
        srd(a, 24+4*k, 8+2*k, 448*256*2)
    for k in range(6):
        a(f"buffer_load_dwordx4 v[{16+8*k}:{19+8*k}], v5, s[{24+4*k}:{27+4*k}], 0 offen")
        a(f"buffer_load_dwordx4 v[{20+8*k}:{23+8*k}], v5, s[{24+4*k}:{27+4*k}], 0 offen offset:16")
    a(f"""s_lshl_b32 s23, s2, 1
s_and_b32 s23, s23, 0xfffffffc
s_add_u32 s20, s20, s23
s_addc_u32 s21, s21, 0
s_load_dword s23, s[20:21], 0""")
    srd(a, 48, 4, 448*KC_STRIDE, WS_KC)
    a(f"""v_lshlrev_b32 v6, 3, v2
v_lshrrev_b32 v10, 3, v2
v_and_b32 v11, 7, v2
v_lshl_add_u32 v7, v10, 7, v11
v_lshrrev_b32 v12, 2, v11
v_and_b32 v13, 3, v11
v_lshlrev_b32 v13, 1, v13
v_lshl_add_u32 v12, v12, 7, v13
v_add_u32 v12, 256, v12
v_lshrrev_b32 v13, 1, v11
v_and_b32 v14, 1, v11
v_lshlrev_b32 v14, 2, v14
v_lshl_add_u32 v13, v13, 7, v14
v_add_u32 v13, 512, v13
v_cmp_eq_u32 vcc, 0, v10
v_cndmask_b32 v8, v13, v12, vcc
v_lshlrev_b32 v12, 7, v2
v_add_u32 v12, 1024, v12
v_cmp_ge_u32 vcc, 8, v2
v_cndmask_b32 v9, 0, v12, vcc
v_lshlrev_b32 v10, 2, v2
ds_write_b32 v10, v7 offset:12288
ds_write_b32 v10, v8 offset:12352
ds_write_b32 v10, v9 offset:12416
v_cvt_f32_u32 v6, v6
v_cvt_f32_u32 v7, v7
v_cvt_f32_u32 v8, v8
v_cvt_f32_u32 v9, v9
s_waitcnt lgkmcnt(0)
s_and_b32 s57, s2, 1
s_lshl_b32 s57, s57, 4
s_lshr_b32 s23, s23, s57
s_lshl_b32 s23, s23, 16
s_mov_b32 s52, {LOG2E}
s_mov_b32 s53, {INV2PI}
v_mov_b32 v10, s23
v_mul_f32 v10, s52, v10
v_exp_f32 v10, v10""")
    bf16r(a, 10, 10)
    for r in range(64, 76): a(f"v_mov_b32 v{r}, 0")
    a("s_waitcnt vmcnt(0)")
    for G in range(16):
        reg = G >> 1
        for k, dst in enumerate((80, 81, 82, 83, 84, 85)):
            src = 16 + 8*k + reg
            if G & 1: a(f"v_and_b32 v{dst}, 0xffff0000, v{src}")
            else: a(f"v_lshlrev_b32 v{dst}, 16, v{src}")
        a(f"""v_mul_f32 v80, v10, v80
v_mul_f32 v81, v10, v81
v_mul_f32 v82, v10, v82
v_mul_f32 v83, v10, v83
v_mul_f32 v80, s52, v80
v_mul_f32 v81, s53, v81
v_mul_f32 v86, v84, v82
v_mul_f32 v87, v84, v83
v_fma_f32 v86, -v85, v83, v86
v_fmac_f32 v87, v85, v82""")
        for k in range(4):
            a(f"v_mul_f32 v{96+k}, v80, v{6+k}\nv_mul_f32 v{100+k}, v81, v{6+k}")
        for k in range(4):
            a(f"v_exp_f32 v{96+k}, v{96+k}\nv_fract_f32 v{100+k}, v{100+k}")
        for k in range(4):
            a(f"v_cos_f32 v{88+2*k}, v{100+k}\nv_sin_f32 v{89+2*k}, v{100+k}")
        for k in range(4):
            a(f"v_mul_f32 v{88+2*k}, v{96+k}, v{88+2*k}\nv_mul_f32 v{89+2*k}, v{96+k}, v{89+2*k}")
        a(f"""v_mul_f32 v104, v86, v88
v_mul_f32 v105, v86, v89
v_fma_f32 v104, -v87, v89, v104
v_fma_f32 v105, -v87, v88, -v105""")
        for T in range(3):
            a(f"v_mfma_f32_16x16x4_f32 v[{64+4*T}:{67+4*T}], v{90+2*T}, v104, v[{64+4*T}:{67+4*T}]")
        for T in range(3):
            a(f"v_mfma_f32_16x16x4_f32 v[{64+4*T}:{67+4*T}], v{91+2*T}, v105, v[{64+4*T}:{67+4*T}]")
    a(f"""v_mul_u32_u24 v10, 3072, v4
v_lshl_add_u32 v10, v1, 4, v10
ds_write_b128 v10, v[64:67]
ds_write_b128 v10, v[68:71] offset:1024
ds_write_b128 v10, v[72:75] offset:2048
s_waitcnt lgkmcnt(0)
s_barrier
v_cmp_gt_u32 vcc, 192, v0
s_and_saveexec_b64 s[54:55], vcc
s_cbranch_execz K1_end
v_lshlrev_b32 v10, 4, v0
ds_read_b128 v[16:19], v10
ds_read_b128 v[20:23], v10 offset:3072
ds_read_b128 v[24:27], v10 offset:6144
ds_read_b128 v[28:31], v10 offset:9216
v_lshlrev_b32 v11, 6, v4
v_lshl_add_u32 v11, v3, 4, v11
ds_read_b128 v[32:35], v11 offset:12288
s_mul_i32 s56, s2, {KC_STRIDE}
v_lshlrev_b32 v12, 3, v2
s_waitcnt lgkmcnt(0)""")
    for r in range(4):
        a(f"""v_add_f32 v{16+r}, v{16+r}, v{20+r}
v_add_f32 v{24+r}, v{24+r}, v{28+r}
v_add_f32 v{16+r}, v{16+r}, v{24+r}
v_add_u32 v{36+r}, v{32+r}, v12
v_cvt_f32_u32 v{40+r}, v{36+r}
v_lshrrev_b32 v{40+r}, 16, v{40+r}
v_subrev_u32 v{40+r}, 17024, v{40+r}
v_cmp_gt_u32 vcc, 128, v{36+r}
v_cndmask_b32 v{40+r}, v{40+r}, v{36+r}, vcc
v_lshlrev_b32 v{40+r}, 2, v{40+r}""")
        a(f"""v_cmp_lt_u32 vcc, 2048, v{36+r}
v_cndmask_b32 v{40+r}, v{40+r}, -1, vcc
v_cmp_eq_u32 vcc, 0, v{32+r}
v_cmp_eq_u32 s[58:59], 2, v4
s_and_b64 vcc, vcc, s[58:59]
v_cndmask_b32 v{40+r}, v{40+r}, -1, vcc
buffer_store_dword v{16+r}, v{40+r}, s[48:51], s56 offen""")
    a("s_branch K1_end")
    a(f"""K1_ln:
s_load_dwordx2 s[6:7], s[0:1], {KA['x']}
s_sub_u32 s8, s2, {N_KG}
s_lshl_b32 s8, s8, 5
v_lshrrev_b32 v1, 3, v0
v_add_u32 v1, s8, v1
v_and_b32 v2, 7, v0
s_movk_i32 s9, 896
v_mul_lo_u32 v3, v1, s9
v_lshl_add_u32 v3, v2, 4, v3
s_waitcnt lgkmcnt(0)""")
    srd(a, 12, 6, XSZ)
    srd(a, 16, 4, XSZ, WS_XNT)
    for m in range(7):
        a(f"buffer_load_dwordx4 v[{8+4*m}:{11+4*m}], v3, s[12:15], 0 offen offset:{128*m}")
    a(f"""s_mov_b32 s20, {f2u(1.0/448)}
s_mov_b32 s21, {f2u(1e-5)}
v_lshlrev_b32 v4, 15, v2
v_lshl_add_u32 v4, v1, 2, v4""")
    X = 40
    for m in range(7):
        a(f"s_waitcnt vmcnt({6-m})")
        for q in range(4):
            a(f"v_lshlrev_b32 v{X+8*m+2*q}, 16, v{8+4*m+q}\nv_and_b32 v{X+8*m+2*q+1}, 0xffff0000, v{8+4*m+q}")
    ln_stats(a, X, 56, 100, 101, 102, 103, 104, 105, 20, 21)
    for m in range(7):
        for q in range(4):
            e = X+8*m+2*q
            a(f"""v_sub_f32 v{e}, v{e}, v100
v_sub_f32 v{e+1}, v{e+1}, v100
v_cvt_pk_bf16_f32 v{e}, v{e}, v{e+1}
v_and_b32 v{e+1}, 0xffff0000, v{e}
v_lshlrev_b32 v{e}, 16, v{e}
v_mul_f32 v{e}, v{e}, v101
v_mul_f32 v{e+1}, v{e+1}, v101
v_cvt_pk_bf16_f32 v{e}, v{e}, v{e+1}
s_mov_b32 s22, {m*262144+q*8192}
buffer_store_dword v{e}, v4, s[16:19], s22 offen""")
    a("s_branch K1_end")
    a(f"""K1_mod:
s_load_dwordx4 s[8:11], s[0:1], {KA['c']}
s_sub_u32 s6, s2, {N_KG+N_LN}
s_lshl_b32 s7, s6, 6
v_lshrrev_b32 v1, 2, v0
v_and_b32 v2, 3, v0
s_movk_i32 s12, 5376
v_mul_lo_u32 v3, v1, s12
v_lshl_add_u32 v3, v2, 4, v3
v_add_u32 v3, s7, v3
v_lshlrev_b32 v4, 1, v1
s_waitcnt lgkmcnt(0)""")
    srd(a, 16, 8, 896)
    srd(a, 20, 10, 448*5376)
    srd(a, 24, 4, 5376, WS_MOD)
    for it in range(7):
        a(f"buffer_load_ushort v{8+it}, v4, s[16:19], 0 offen offset:{128*it}")
    for it in range(7):
        a(f"s_mov_b32 s13, {it*344064}\nbuffer_load_dwordx4 v[{16+4*it}:{19+4*it}], v3, s[20:23], s13 offen")
    a(f"s_mov_b32 s14, {LOG2E | 0x80000000}")
    a("s_waitcnt vmcnt(7)")
    for it in range(7):
        a(f"""v_lshlrev_b32 v{8+it}, 16, v{8+it}
v_mul_f32 v50, s14, v{8+it}
v_exp_f32 v50, v50
v_add_f32 v50, 1.0, v50
v_rcp_f32 v50, v50
v_mul_f32 v{8+it}, v{8+it}, v50""")
        bf16r(a, 8+it, 8+it)
    for it in range(7):
        a(f"s_waitcnt vmcnt({6-it})")
        for q in range(4):
            a(f"v_lshlrev_b32 v50, 16, v{16+4*it+q}\nv_and_b32 v51, 0xffff0000, v{16+4*it+q}")
            if it == 0:
                a(f"v_mul_f32 v{52+2*q}, v{8+it}, v50\nv_mul_f32 v{53+2*q}, v{8+it}, v51")
            else:
                a(f"v_fmac_f32 v{52+2*q}, v{8+it}, v50\nv_fmac_f32 v{53+2*q}, v{8+it}, v51")
    for q in range(8):
        a(f"v_add_f32 v{52+q}, v{52+q}, v{52+q} row_ror:4 row_mask:0xf bank_mask:0xf")
    for q in range(8):
        a(f"v_add_f32 v{52+q}, v{52+q}, v{52+q} row_ror:8 row_mask:0xf bank_mask:0xf")
    a(f"""v_lshrrev_b32 v5, 4, v0
v_lshlrev_b32 v5, 7, v5
v_lshl_add_u32 v5, v2, 5, v5
ds_write_b128 v5, v[52:55]
ds_write_b128 v5, v[56:59] offset:16
s_waitcnt lgkmcnt(0)
s_barrier
v_cmp_gt_u32 vcc, 32, v0
s_and_saveexec_b64 s[30:31], vcc
s_cbranch_execz K1_end
v_lshlrev_b32 v5, 2, v0""")
    for q in range(16):
        a(f"ds_read_b32 v{60+q}, v5 offset:{128*q}")
    a("s_waitcnt lgkmcnt(0)")
    for st in (8, 4, 2, 1):
        for q in range(st):
            a(f"v_add_f32 v{60+q}, v{60+q}, v{60+q+st}")
    a(f"""v_cvt_pk_bf16_f32 v60, v60, v60
v_lshlrev_b32 v5, 1, v0
buffer_store_short v60, v5, s[24:27], s7 offen
K1_end:
s_endpgm""")
    return a.finalize(), 112

KERNELS = []
def build(which):
    launches = []; text = ""; descs = ""
    for (nm, fn, grid, block, lds) in which:
        body, vg = fn()
        launches.append(f"; @launch kernel={nm} grid=({grid},1,1) block=({block},1,1) lds={lds}")
        text += kernel_header(nm) + body
        descs += ".p2align 6\n" + kernel_desc(nm, vg)
    hdr = open("cdna_kernels/%s.s.ref" % NAME).read().split("; Override launch geometry")[0]
    out = hdr + "\n".join(launches) + "\n" + '.amdgcn_target "amdgcn-amd-amdhsa--gfx950"\n.text\n' + text + '.section .rodata,"a"\n' + descs
    return out

if __name__ == "__main__":
    import gen_all
    out = build(gen_all.ALL)
    path = sys.argv[1] if len(sys.argv) > 1 else "cdna_kernels/%s.s" % NAME
    open(path, "w").write(out)
    print("wrote", path, len(out))
```

```python
import re

TRANS = ("v_exp_f32","v_log_f32","v_rcp_f32","v_rsq_f32","v_sqrt_f32","v_sin_f32","v_cos_f32","v_rcp_iflag_f32")
MFMA_INFO = {
    "v_mfma_f32_16x16x32_bf16": ("xdl", 4),
    "v_mfma_f32_32x32x16_bf16": ("xdl", 8),
    "v_mfma_f32_16x16x16_bf16": ("xdl", 4),
    "v_mfma_f32_16x16x4_f32": ("sgemm", 8),
    "v_mfma_f32_32x32x2_f32": ("sgemm", 16),
}
IDX = {2:0,4:1,8:2,16:3}

def regs_of(op):
    op = op.strip()
    neg = op.startswith("-")
    if neg: op = op[1:]
    m = re.match(r"^abs\((.*)\)$", op) or re.match(r"^\|(.*)\|$", op)
    if m: op = m.group(1)
    m = re.match(r"^([vsa])(\d+)$", op)
    if m: return {(m.group(1), int(m.group(2)))}
    m = re.match(r"^([vsa])\[(\d+):(\d+)\]$", op)
    if m: return {(m.group(1), i) for i in range(int(m.group(2)), int(m.group(3))+1)}
    if op == "vcc": return {("s", 106), ("s", 107)}
    if op == "vcc_lo": return {("s", 106)}
    if op == "vcc_hi": return {("s", 107)}
    if op == "exec": return {("s", 126), ("s", 127)}
    if op == "m0": return {("s", 124)}
    return set()

class Ins:
    def __init__(self, text):
        self.text = text
        t = text.split(";")[0].strip()
        self.label = t.endswith(":")
        self.w = set(); self.r = set(); self.kind = "other"; self.mn = ""
        self.srcC = set(); self.srcAB = set(); self.dpp = False; self.nstates = 1
        self.widestore = set()
        if self.label or not t or t.startswith("."):
            self.kind = "label" if self.label else "dir"; self.nstates = 0; return
        parts = t.split(None, 1)
        mn = parts[0]; self.mn = mn
        rest = parts[1] if len(parts) > 1 else ""
        ops = []; cur = ""; depth = 0
        for ch in rest:
            if ch == "[": depth += 1
            if ch == "]": depth -= 1
            if ch == "," and depth == 0: ops.append(cur.strip()); cur = ""
            else: cur += ch
        if cur.strip(): ops.append(cur.strip())
        mods = []
        if ops:
            sp = ops[-1].split()
            ops[-1] = sp[0]; mods = sp[1:]
        self.ops = ops; self.mods = mods
        base = re.sub(r"_(e32|e64|dpp|sdwa)$", "", mn)
        self.base = base
        R = lambda lst: set().union(*[regs_of(o) for o in lst]) if lst else set()
        if any(m.startswith(("quad_perm","row_shr","row_shl","row_ror","row_mirror","row_half_mirror","row_bcast","wave_","row_newbcast")) for m in mods):
            self.dpp = True
        if base == "s_nop":
            self.kind = "nop"; self.nstates = int(ops[0], 0) + 1
        elif base in MFMA_INFO:
            self.kind = "mfma"; self.w = R(ops[:1]); self.srcAB = R(ops[1:3]); self.srcC = R(ops[3:4]); self.r = self.srcAB | self.srcC
            self.mclass, self.passes = MFMA_INFO[base]
        elif base.startswith("v_cmp"):
            self.kind = "valu"; self.w = R(ops[:1]); self.r = R(ops[1:])
        elif base in ("v_readfirstlane_b32", "v_readlane_b32"):
            self.kind = "valu"; self.w = R(ops[:1]); self.r = R(ops[1:])
        elif base.startswith("v_permlane") and base.endswith("swap_b32"):
            self.kind = "valu"; self.w = R(ops[:2]); self.r = R(ops[:2])
        elif base in ("v_add_co_u32","v_sub_co_u32","v_addc_co_u32","v_subb_co_u32","v_subrev_co_u32"):
            self.kind = "valu"; self.w = R(ops[:2]); self.r = R(ops[2:])
        elif base.startswith("v_"):
            self.kind = "valu"; self.w = R(ops[:1]); self.r = R(ops[1:])
            if base in ("v_fmac_f32","v_pk_fmac_f16","v_dot2c_f32_bf16","v_writelane_b32") or self.dpp: self.r |= self.w
        elif base.startswith("buffer_load") or base.startswith("global_load"):
            self.kind = "vmem"
            if "lds" in mods or "_lds_" in base: self.r = R(ops)
            else:
                self.w = R(ops[:1]); self.r = R(ops[1:])
                if "d16" in base: self.r |= self.w
        elif base.startswith("buffer_store") or base.startswith("global_store") or base.startswith("buffer_atomic") or base.startswith("global_atomic"):
            self.kind = "vmem"; self.r = R(ops)
            if "atomic" in base and "sc0" in mods: self.w = R(ops[:1])
            if base.endswith("x4") or base.endswith("x3"):
                self.widestore = R(ops[:1]) if base.startswith("buffer") else R(ops[1:2])
        elif base.startswith("ds_read") or base.startswith("ds_bpermute") or base.startswith("ds_swizzle") or base.startswith("ds_permute"):
            self.kind = "ds"; self.w = R(ops[:1]); self.r = R(ops[1:])
        elif base.startswith("ds_"):
            self.kind = "ds"; self.r = R(ops)
        elif base.startswith("s_"):
            self.kind = "salu"
            if base.startswith(("s_cmp","s_waitcnt","s_barrier","s_branch","s_cbranch","s_endpgm","s_setprio","s_sleep")):
                self.r = R(ops)
            else:
                self.w = R(ops[:1]); self.r = R(ops[1:])
                if "saveexec" in base: self.w |= regs_of("exec")
        self.trans = base in TRANS

def need(p, c):
    n = 0
    vw = {x for x in p.w if x[0] in "va"}; sw = {x for x in p.w if x[0] == "s"}
    if p.kind == "valu":
        if c.kind == "mfma" and vw & c.r: n = max(n, 2)
        if p.trans and c.kind == "valu" and not c.trans and vw & c.r: n = max(n, 1)
        if p.trans and c.kind in ("vmem","ds") and vw & c.r: n = max(n, 1)
        if sw:
            if c.kind == "valu" and sw & c.r:
                n = max(n, 4 if c.base in ("v_readlane_b32","v_writelane_b32") else 2)
            if c.kind == "vmem" and sw & c.r: n = max(n, 5)
            if c.kind == "salu" and sw & c.r: n = max(n, 1)
        if c.kind == "valu" and vw & c.r:
            if c.dpp or c.base.startswith("v_permlane"): n = max(n, 2)
            if c.base in ("v_readfirstlane_b32","v_readlane_b32"): n = max(n, 1)
    if p.kind == "salu":
        if ("s",124) in p.w and c.kind == "vmem" and ("lds" in getattr(c,"mods",[]) or "_lds_" in c.base): n = max(n, 1)
        if p.w & regs_of("exec") and c.kind == "valu" and c.dpp: n = max(n, 0)
    if p.kind == "mfma":
        i = IDX[p.passes]
        full = (5,8,12,20)[i] if p.mclass == "xdl" else (4,6,10,18)[i]
        if c.kind == "mfma":
            if p.w & c.srcAB: n = max(n, full)
            if p.w & c.srcC:
                if c.srcC == p.w and c.base == p.base: n = max(n, 2 if p.passes == 2 else 0)
                else: n = max(n, (4,6,10,18)[i])
            elif p.w & c.w: n = max(n, full)
        elif c.kind in ("valu","vmem","ds"):
            if p.w & (c.r | c.w): n = max(n, full)
        if p.mclass == "xdl" and c.kind == "valu" and p.srcC & c.w: n = max(n, (1,3,7,15)[i])
    if p.widestore:
        if c.kind == "valu" and p.widestore & c.w: n = max(n, 2)
        elif p.widestore & c.w: n = max(n, 1)
    return n

STAMPS = False
class Asm:
    def __init__(self): self.lines = []; self.nst = 0
    def stamp(self):
        if not STAMPS: return
        k = self.nst; self.nst += 1
        self.lines.append(f"s_memrealtime s[{64+2*k}:{65+2*k}]")
    def dump_stamps(self, kid, ws_pair=4):
        if not STAMPS: return
        L = self.lines
        L.append("s_waitcnt lgkmcnt(0)")
        L.append("s_mov_b64 exec, 1")
        L.append(f"s_add_u32 s92, s{ws_pair}, {0x800000 + kid*0x10000}")
        L.append(f"s_addc_u32 s93, s{ws_pair+1}, 0")
        L.append("s_mov_b32 s94, 0x10000")
        L.append("s_mov_b32 s95, 0x00020000")
        L.append("s_lshl_b32 s91, s2, 6")
        L.append("v_lshlrev_b32 v1, 16, v0")
        for k in range(self.nst):
            L.append(f"v_mov_b32 v2, s{64+2*k}")
            L.append(f"buffer_store_dword v2, v1, s[92:95], s91 offen offset:{4*k}")
    def __call__(self, text):
        for ln in text.strip("\n").split("\n"):
            if ln.strip(): self.lines.append(ln.strip())
    def raw(self, text): self.lines.append(text)
    def finalize(self):
        out = []
        for ln in self.lines:
            ins = Ins(ln)
            if ins.kind in ("label","dir") or not ins.mn:
                out.append(ins); continue
            dist = 0; req = 0
            for p in reversed(out):
                if p.kind in ("label","dir"): continue
                if dist >= 24: break
                k = need(p, ins)
                if k > dist: req = max(req, k - dist)
                dist += p.nstates
            while req > 0:
                k = min(req, 16)
                out.append(Ins(f"s_nop {k-1}")); req -= k
            out.append(ins)
        txt = []
        for i in out:
            if i.kind in ("label","dir"): txt.append(i.text)
            else: txt.append("    " + i.text)
        return "\n".join(txt) + "\n"
```

```python
from gen import *

WS_MODP = 0x18000
WS_MODP = 0x1C0000
REG = 8704
K1_LDS = 8*REG + 256 + 16384
PT = 8*REG

def cmul(a, c, x, y, conj=False):
    a(f"v_pk_mul_f32 v[{c}:{c+1}], v[{x}:{x+1}], v[{y}:{y+1}] op_sel_hi:[1,0]")
    neg = "neg_hi:[1,0,0]" if conj else "neg_lo:[1,0,0]"
    a(f"v_pk_fma_f32 v[{c}:{c+1}], v[{x}:{x+1}], v[{y}:{y+1}], v[{c}:{c+1}] op_sel:[1,1,0] op_sel_hi:[0,1,1] {neg}")

def gen_k1():
    a = Asm()
    a.stamp()
    a(f"""s_cmp_ge_u32 s2, 256
s_cbranch_scc1 K1_end
s_load_dwordx2 s[4:5], s[0:1], {KA['ws']}
v_lshrrev_b32 v4, 6, v0
v_and_b32 v1, 63, v0
v_readfirstlane_b32 s3, v4
s_cmp_eq_u32 s3, 8
s_cbranch_scc1 K1_ln
s_cmp_eq_u32 s3, 9
s_cbranch_scc1 K1_mod
s_cmp_ge_u32 s2, 224
s_cbranch_scc1 K1_end""")
    a(f"""s_load_dwordx4 s[8:11], s[0:1], {KA['are']}
s_load_dwordx4 s[12:15], s[0:1], {KA['bre']}
s_load_dwordx4 s[16:19], s[0:1], {KA['cre']}
s_load_dwordx2 s[20:21], s[0:1], {KA['ldt']}
s_lshl_b32 s22, s2, 10
v_lshlrev_b32 v5, 1, v0
v_add_u32 v5, s22, v5
v_and_b32 v2, 15, v1
v_lshrrev_b32 v3, 4, v1
s_mul_i32 s60, s3, {REG}
s_lshl_b32 s23, s2, 2
s_waitcnt lgkmcnt(0)""")
    for k in range(6):
        srd(a, 24+4*k, 8+2*k, 448*256*2)
    for k in range(6):
        a(f"buffer_load_ushort v{16+k}, v5, s[{24+4*k}:{27+4*k}], 0 offen")
    a(f"""s_add_u32 s20, s20, s23
s_addc_u32 s21, s21, 0
s_load_dword s23, s[20:21], 0
s_mov_b32 m0, s60""")
    srd(a, 48, 4, 448*KC_STRIDE, WS_KC)
    a(f"""v_lshrrev_b32 v10, 3, v2
v_and_b32 v11, 7, v2
v_lshl_add_u32 v7, v10, 7, v11
v_lshrrev_b32 v12, 2, v11
v_and_b32 v13, 3, v11
v_lshlrev_b32 v13, 1, v13
v_lshl_add_u32 v12, v12, 7, v13
v_add_u32 v12, 256, v12
v_lshrrev_b32 v13, 1, v11
v_and_b32 v14, 1, v11
v_lshlrev_b32 v14, 2, v14
v_lshl_add_u32 v13, v13, 7, v14
v_add_u32 v13, 512, v13
v_cmp_eq_u32 vcc, 0, v10
v_cndmask_b32 v8, v13, v12, vcc
v_lshlrev_b32 v12, 7, v2
v_add_u32 v12, 1024, v12
v_cmp_ge_u32 vcc, 8, v2
v_cndmask_b32 v9, 0, v12, vcc
v_lshlrev_b32 v10, 2, v2
v_add_u32 v10, {PT}, v10
ds_write_b32 v10, v7
ds_write_b32 v10, v8 offset:64
ds_write_b32 v10, v9 offset:128
v_mul_u32_u24 v6, 544, v2
v_lshl_add_u32 v6, v3, 4, v6
v_add_u32 v6, s60, v6
s_mov_b32 s52, {LOG2E}
s_mov_b32 s53, {INV2PI}
s_lshr_b32 s57, s3, 2
s_lshl_b32 s57, s57, 4
s_waitcnt lgkmcnt(0)
s_lshr_b32 s23, s23, s57
s_lshl_b32 s23, s23, 16
v_mov_b32 v10, s23
v_mul_f32 v10, s52, v10
v_exp_f32 v10, v10""")
    bf16r(a, 10, 10)
    a("s_waitcnt vmcnt(0)")
    a.stamp()
    for k in range(6): a(f"v_lshlrev_b32 v{16+k}, 16, v{16+k}")
    a(f"""v_mul_f32 v16, v10, v16
v_mul_f32 v17, v10, v17
v_mul_f32 v18, v10, v18
v_mul_f32 v19, v10, v19
v_mul_f32 v16, s52, v16
v_mul_f32 v17, s53, v17""")
    Z = {e: 24 + 2*i for i, e in enumerate([1,2,4,8,16,32,64,128,256,512,1024,2048,3,5,6,7,384,640,768,896])}
    dirs = [1, 8, 128, 1024]
    for k, e in enumerate(dirs):
        a(f"v_mul_f32 v{64+k}, {float(e)}, v16\nv_mul_f32 v{68+k}, {float(e)}, v17")
    for k, e in enumerate(dirs):
        a(f"v_exp_f32 v{64+k}, v{64+k}\nv_fract_f32 v{68+k}, v{68+k}")
    for k, e in enumerate(dirs):
        a(f"v_cos_f32 v{Z[e]}, v{68+k}\nv_sin_f32 v{Z[e]+1}, v{68+k}")
    B = [72 + 2*b for b in range(16)]
    cmul(a, B[0], 20, 18)
    a(f"v_xor_b32 v{B[0]+1}, 0x80000000, v{B[0]+1}")
    for k, e in enumerate(dirs):
        a(f"v_mul_f32 v{Z[e]}, v{64+k}, v{Z[e]}\nv_mul_f32 v{Z[e]+1}, v{64+k}, v{Z[e]+1}")
    def sq(e2, e): cmul(a, Z[e2], Z[e], Z[e])
    sq(16, 8); sq(2, 1); sq(256, 128); sq(2048, 1024); sq(32, 16); sq(4, 2); sq(512, 256); sq(64, 32)
    tmpi = [0]
    TH = [104, 105, 106]; TT = [108, 110, 112]; TL = [107, 114, 115]
    def split_write(x, row):
        k = tmpi[0] % 3; tmpi[0] += 1
        h, t, l = TH[k], TT[k], TL[k]
        a(f"""v_cvt_pk_bf16_f32 v{h}, v{x}, v{x+1}
v_lshlrev_b32 v{t}, 16, v{h}
v_and_b32 v{t+1}, 0xffff0000, v{h}
ds_write_addtid_b32 v{h} offset:{row*544}
v_pk_add_f32 v[{t}:{t+1}], v[{x}:{x+1}], v[{t}:{t+1}] neg_lo:[0,1] neg_hi:[0,1]
v_cvt_pk_bf16_f32 v{l}, v{t}, v{t+1}
ds_write_addtid_b32 v{l} offset:{row*544+256}""")
    cmul(a, B[1], B[0], Z[8], True); cmul(a, B[2], B[0], Z[16], True); cmul(a, B[3], B[1], Z[16], True)
    for b in range(4): cmul(a, B[4+b], B[b], Z[32], True)
    for b in range(8): cmul(a, B[8+b], B[b], Z[64], True)
    a.stamp()
    for b in range(16): split_write(B[b], b)
    a.stamp()
    cmul(a, Z[3], Z[1], Z[2]); cmul(a, Z[5], Z[1], Z[4]); cmul(a, Z[6], Z[2], Z[4]); cmul(a, Z[384], Z[256], Z[128])
    cmul(a, Z[7], Z[3], Z[4]); cmul(a, Z[640], Z[512], Z[128]); cmul(a, Z[768], Z[512], Z[256]); cmul(a, Z[896], Z[512], Z[384])
    AV = B
    def gen_tile(T):
        rows = []
        def prod(i, x, y):
            cmul(a, AV[i], Z[x], Z[y]); rows.append((i, AV[i]))
        if T == 0:
            a(f"v_mov_b32 v{AV[0]}, 1.0\nv_mov_b32 v{AV[0]+1}, 0"); rows.append((0, AV[0]))
            for e in range(1, 8): rows.append((e, Z[e]))
            rows.append((8, Z[128]))
            for e in range(1, 8): prod(8+e, 128, e)
        elif T == 1:
            for ai, base in enumerate((256, 384)):
                rows.append((4*ai, Z[base]))
                for e in range(1, 4): prod(4*ai+e, base, 2*e)
            for ai, base in enumerate((512, 640, 768, 896)):
                rows.append((8+2*ai, Z[base])); prod(9+2*ai, base, 4)
        else:
            rows.append((0, Z[1024]))
            for ai in range(1, 8): prod(ai, 1024, 128*ai)
            rows.append((8, Z[2048]))
        return rows
    BF = 116
    AF = 64
    ACC = 156
    rows = gen_tile(0)
    a("s_waitcnt lgkmcnt(0)")
    for s in range(4):
        a(f"ds_read_b128 v[{BF+8*s}:{BF+8*s+3}], v6 offset:{64*s}\nds_read_b128 v[{BF+8*s+4}:{BF+8*s+7}], v6 offset:{64*s+256}")
    a("s_waitcnt lgkmcnt(0)")
    AFR = [8, 16, 64, 148]
    for T in range(3):
        a.stamp()
        for (r, x) in rows: split_write(x, r)
        if T < 2: rows = gen_tile(T+1)
        a("s_waitcnt lgkmcnt(0)")
        for s in range(4):
            f = AFR[s]
            a(f"ds_read_b128 v[{f}:{f+3}], v6 offset:{64*s}\nds_read_b128 v[{f+4}:{f+7}], v6 offset:{64*s+256}")
        c = ACC + 4*T
        for s in range(4):
            f = AFR[s]; b = BF + 8*s
            a(f"s_waitcnt lgkmcnt({6-2*s})")
            c0 = "0" if s == 0 else f"v[{c}:{c+3}]"
            a(f"""v_mfma_f32_16x16x32_bf16 v[{c}:{c+3}], v[{f}:{f+3}], v[{b}:{b+3}], {c0}
v_mfma_f32_16x16x32_bf16 v[{c}:{c+3}], v[{f+4}:{f+7}], v[{b}:{b+3}], v[{c}:{c+3}]
v_mfma_f32_16x16x32_bf16 v[{c}:{c+3}], v[{f}:{f+3}], v[{b+4}:{b+7}], v[{c}:{c+3}]""")
    a.stamp()
    a(f"""v_lshlrev_b32 v10, 4, v1
v_add_u32 v10, s60, v10
ds_write_b128 v10, v[{ACC}:{ACC+3}]
ds_write_b128 v10, v[{ACC+4}:{ACC+7}] offset:1024
ds_write_b128 v10, v[{ACC+8}:{ACC+11}] offset:2048
s_waitcnt lgkmcnt(0)
s_barrier""")
    a.stamp()
    a(f"""s_and_b32 s61, s3, 3
s_cmp_eq_u32 s61, 3
s_cbranch_scc1 K1_end
s_lshr_b32 s62, s3, 2
s_mul_i32 s63, s62, {4*REG}
s_lshl_b32 s56, s61, 10
s_add_u32 s63, s63, s56
v_lshlrev_b32 v10, 4, v1
v_add_u32 v10, s63, v10
ds_read_b128 v[16:19], v10
ds_read_b128 v[20:23], v10 offset:{REG}
ds_read_b128 v[24:27], v10 offset:{2*REG}
ds_read_b128 v[28:31], v10 offset:{3*REG}
s_lshl_b32 s56, s61, 6
s_add_u32 s56, s56, {PT}
v_lshlrev_b32 v11, 4, v3
v_add_u32 v11, s56, v11
ds_read_b128 v[32:35], v11
s_lshl_b32 s56, s2, 1
s_add_u32 s56, s56, s62
s_mul_i32 s56, s56, {KC_STRIDE}
v_lshlrev_b32 v12, 3, v2
s_cmp_eq_u32 s61, 2
s_cselect_b64 s[58:59], -1, 0
s_waitcnt lgkmcnt(0)""")
    for r in range(4):
        a(f"""v_add_f32 v{16+r}, v{16+r}, v{20+r}
v_add_f32 v{24+r}, v{24+r}, v{28+r}
v_add_f32 v{16+r}, v{16+r}, v{24+r}
v_add_u32 v{36+r}, v{32+r}, v12
v_cvt_f32_u32 v{40+r}, v{36+r}
v_lshrrev_b32 v{40+r}, 16, v{40+r}
v_subrev_u32 v{40+r}, 17024, v{40+r}
v_cmp_gt_u32 vcc, 128, v{36+r}
v_cndmask_b32 v{40+r}, v{40+r}, v{36+r}, vcc
v_lshlrev_b32 v{40+r}, 2, v{40+r}
v_cmp_lt_u32 vcc, 2048, v{36+r}
v_cndmask_b32 v{40+r}, v{40+r}, -1, vcc
v_cmp_eq_u32 vcc, 0, v{32+r}
s_and_b64 vcc, vcc, s[58:59]
v_cndmask_b32 v{40+r}, v{40+r}, -1, vcc
buffer_store_dword v{16+r}, v{40+r}, s[48:51], s56 offen""")
    a.stamp(); a.dump_stamps(0); a.nst = 1
    a("s_branch K1_end")
    a(f"""K1_ln:
s_setprio 3
s_load_dwordx2 s[6:7], s[0:1], {KA['x']}
s_lshl_b32 s8, s2, 3
v_lshrrev_b32 v5, 3, v1
v_add_u32 v5, s8, v5
v_and_b32 v2, 7, v1
s_movk_i32 s9, 896
v_mul_lo_u32 v3, v5, s9
v_lshl_add_u32 v3, v2, 4, v3
s_waitcnt lgkmcnt(0)""")
    srd(a, 12, 6, XSZ)
    srd(a, 16, 4, XSZ, WS_XNT)
    for m in range(7):
        a(f"buffer_load_dwordx4 v[{8+4*m}:{11+4*m}], v3, s[12:15], 0 offen offset:{128*m}")
    a(f"""s_mov_b32 s20, {f2u(1.0/448)}
s_mov_b32 s21, {f2u(1e-5)}
v_lshlrev_b32 v4, 15, v2
v_lshl_add_u32 v4, v5, 2, v4""")
    X = 40
    for m in range(7):
        a(f"s_waitcnt vmcnt({6-m})")
        for q in range(4):
            a(f"v_lshlrev_b32 v{X+8*m+2*q}, 16, v{8+4*m+q}\nv_and_b32 v{X+8*m+2*q+1}, 0xffff0000, v{8+4*m+q}")
    a.stamp()
    for i in range(4): a(f"v_pk_add_f32 v[{100+2*i}:{101+2*i}], v[{X+2*i}:{X+2*i+1}], v[{X+8+2*i}:{X+9+2*i}]")
    for i in range(8, 28): a(f"v_pk_add_f32 v[{100+2*(i%4)}:{101+2*(i%4)}], v[{100+2*(i%4)}:{101+2*(i%4)}], v[{X+2*i}:{X+2*i+1}]")
    a("""v_pk_add_f32 v[100:101], v[100:101], v[102:103]
v_pk_add_f32 v[104:105], v[104:105], v[106:107]
v_pk_add_f32 v[100:101], v[100:101], v[104:105]
v_add_f32 v100, v100, v101""")
    sum8lanes(a, 100, 101)
    a("v_mul_f32 v110, s20, v100\nv_mov_b32 v111, v110")
    for i in range(28):
        t = 112 + 2*(i % 4); ac = 100 + 2*(i % 4)
        a(f"v_pk_add_f32 v[{t}:{t+1}], v[{X+2*i}:{X+2*i+1}], v[110:111] neg_lo:[0,1] neg_hi:[0,1]")
        if i < 4: a(f"v_pk_mul_f32 v[{ac}:{ac+1}], v[{t}:{t+1}], v[{t}:{t+1}]")
        else: a(f"v_pk_fma_f32 v[{ac}:{ac+1}], v[{t}:{t+1}], v[{t}:{t+1}], v[{ac}:{ac+1}]")
    a("""v_pk_add_f32 v[100:101], v[100:101], v[102:103]
v_pk_add_f32 v[104:105], v[104:105], v[106:107]
v_pk_add_f32 v[100:101], v[100:101], v[104:105]
v_add_f32 v100, v100, v101""")
    sum8lanes(a, 100, 101)
    bf16r(a, 110, 110)
    a("v_mov_b32 v111, v110\nv_mul_f32 v100, s20, v100")
    bf16r(a, 100, 100)
    a("v_add_f32 v100, s21, v100")
    bf16r(a, 100, 100)
    a("v_sqrt_f32 v100, v100")
    bf16r(a, 100, 100)
    a("v_rcp_f32 v112, v100\nv_mov_b32 v113, v112")
    a.stamp()
    for m in range(7):
        for q in range(4):
            e = X+8*m+2*q
            a(f"""v_pk_add_f32 v[{e}:{e+1}], v[{e}:{e+1}], v[110:111] neg_lo:[0,1] neg_hi:[0,1]
v_cvt_pk_bf16_f32 v{e}, v{e}, v{e+1}
v_and_b32 v{e+1}, 0xffff0000, v{e}
v_lshlrev_b32 v{e}, 16, v{e}
v_pk_mul_f32 v[{e}:{e+1}], v[{e}:{e+1}], v[112:113]
v_cvt_pk_bf16_f32 v{e}, v{e}, v{e+1}
s_mov_b32 s22, {m*262144+q*8192}
buffer_store_dword v{e}, v4, s[16:19], s22 offen""")
    if asmgen_stamps():
        a("v_mov_b32 v0, v1\ns_add_u32 s2, s2, 256")
    a.stamp(); a.dump_stamps(0); a.nst = 1
    a("s_branch K1_end")
    a(f"""K1_mod:
s_cmp_ge_u32 s2, 168
s_cbranch_scc1 K1_end
s_setprio 3
s_load_dwordx4 s[8:11], s[0:1], {KA['c']}
s_lshr_b32 s6, s2, 2
s_and_b32 s7, s2, 3
s_mul_i32 s12, s7, {112*5376}
s_lshl_b32 s13, s6, 7
s_add_u32 s12, s12, s13
v_lshrrev_b32 v5, 3, v1
v_and_b32 v2, 7, v1
s_movk_i32 s14, 5376
v_mul_lo_u32 v3, v5, s14
v_lshl_add_u32 v3, v2, 4, v3
v_add_u32 v3, s12, v3
s_mul_i32 s15, s7, 224
v_lshl_add_u32 v4, v5, 1, s15
s_waitcnt lgkmcnt(0)""")
    srd(a, 16, 8, 896)
    srd(a, 20, 10, 448*5376)
    srd(a, 24, 4, 4*2688*4, WS_MODP)
    for it in range(14):
        a(f"buffer_load_ushort v{8+it}, v4, s[16:19], 0 offen offset:{16*it}")
    for it in range(14):
        a(f"s_mov_b32 s13, {it*8*5376}\nbuffer_load_dwordx4 v[{24+4*it}:{27+4*it}], v3, s[20:23], s13 offen")
    a(f"s_mov_b32 s14, {LOG2E | 0x80000000}")
    a("s_waitcnt vmcnt(14)")
    for it in range(14):
        a(f"v_lshlrev_b32 v{8+it}, 16, v{8+it}\nv_mul_f32 v{80+it}, s14, v{8+it}")
    for it in range(14): a(f"v_exp_f32 v{80+it}, v{80+it}")
    for it in range(14): a(f"v_add_f32 v{80+it}, 1.0, v{80+it}")
    for it in range(14): a(f"v_rcp_f32 v{80+it}, v{80+it}")
    for it in range(14): a(f"v_mul_f32 v{8+it}, v{8+it}, v{80+it}")
    for it in range(0, 14, 2):
        a(f"v_cvt_pk_bf16_f32 v{8+it}, v{8+it}, v{9+it}\nv_and_b32 v{9+it}, 0xffff0000, v{8+it}\nv_lshlrev_b32 v{8+it}, 16, v{8+it}")
    for it in range(14):
        a(f"s_waitcnt vmcnt({13-it})")
        sb = 8 + (it & ~1)
        sel = "op_sel:[0,1,0] op_sel_hi:[1,1,1]" if it & 1 else "op_sel_hi:[1,0,1]"
        sel2 = "op_sel:[0,1] op_sel_hi:[1,1]" if it & 1 else "op_sel_hi:[1,0]"
        for q in range(4):
            a(f"v_lshlrev_b32 v96, 16, v{24+4*it+q}\nv_and_b32 v97, 0xffff0000, v{24+4*it+q}")
            if it == 0: a(f"v_pk_mul_f32 v[{100+2*q}:{101+2*q}], v[96:97], v[{sb}:{sb+1}] {sel2}")
            else: a(f"v_pk_fma_f32 v[{100+2*q}:{101+2*q}], v[96:97], v[{sb}:{sb+1}], v[{100+2*q}:{101+2*q}] {sel}")
    a.stamp()
    for q in range(8):
        a(f"v_add_f32 v{100+q}, v{100+q}, v{100+q} row_ror:8 row_mask:0xf bank_mask:0xf")
    for q in range(8):
        a(f"v_mov_b32 v{110+q}, v{100+q}")
    for q in range(8):
        a(f"v_permlane32_swap_b32 v{100+q}, v{110+q}")
    for q in range(8):
        a(f"v_add_f32 v{100+q}, v{100+q}, v{110+q}")
    for q in range(8):
        a(f"v_mov_b32 v{110+q}, v{100+q}")
    for q in range(8):
        a(f"v_permlane16_swap_b32 v{100+q}, v{110+q}")
    for q in range(8):
        a(f"v_add_f32 v{100+q}, v{100+q}, v{110+q}")
    a(f"""s_mul_i32 s12, s7, {2688*4}
s_lshl_b32 s13, s6, 8
s_add_u32 s12, s12, s13
v_lshlrev_b32 v3, 5, v1
v_bfrev_b32 v4, 1
v_cmp_gt_u32 vcc, 8, v1
v_cndmask_b32 v3, v4, v3, vcc
buffer_store_dwordx4 v[100:103], v3, s[24:27], s12 offen
buffer_store_dwordx4 v[104:107], v3, s[24:27], s12 offen offset:16""")
    if asmgen_stamps():
        a("v_mov_b32 v0, v1\ns_add_u32 s2, s2, 512")
    a.stamp(); a.stamp(); a.dump_stamps(0)
    a("""K1_end:
s_endpgm""")
    return a.finalize(), 168

def asmgen_stamps():
    import asmgen
    return asmgen.STAMPS
```

```python
from gen import *
from gen_k1 import WS_MODP

class DSQ:
    def __init__(self, a): self.a = a; self.q = []
    def issue(self, text, tag): self.a(text); self.q.append(tag)
    def wait(self, tag):
        if tag not in self.q: return
        i = len(self.q) - 1 - self.q[::-1].index(tag)
        n = len(self.q) - 1 - i
        self.a(f"s_waitcnt lgkmcnt({min(n,15)})")
        self.q = self.q[i+1:] if n <= 15 else self.q[len(self.q)-15:]
    def drain(self): self.a("s_waitcnt lgkmcnt(0)"); self.q = []

UCS = 4384; UCD = 8*UCS; KH = 2*UCD; KHD = 8704; K2_LDS = KH + 2*KHD

def gen_k2():
    a = Asm()
    a.stamp()
    a(f"""s_cmp_ge_u32 s2, 224
s_cbranch_scc1 K2_end
s_load_dwordx2 s[4:5], s[0:1], {KA['ws']}
s_load_dwordx2 s[6:7], s[0:1], {KA['dsk']}
v_lshlrev_b32 v1, 4, v0
v_cmp_gt_u32 vcc, 2, v0
v_cndmask_b32 v2, v1, -1, vcc
v_cmp_gt_u32 vcc, 1, v0
v_cndmask_b32 v3, v1, -1, vcc
v_bfrev_b32 v4, 1
v_cndmask_b32 v3, v1, v4, vcc
v_cmp_gt_u32 vcc, 2, v0
v_cndmask_b32 v2, v1, v4, vcc
s_lshl_b32 s20, s2, 13
s_lshl_b32 s21, s2, 2
s_mul_i32 s22, s2, {2*KC_STRIDE}
s_waitcnt lgkmcnt(0)
s_add_u32 s8, s4, s20
s_addc_u32 s9, s5, 0
s_add_u32 s8, s8, {WS_XNT-32}
s_addc_u32 s9, s9, 0
s_mov_b32 s10, 8224
s_mov_b32 s11, 0x00020000
buffer_load_dwordx4 v[16:19], v2, s[8:11], 0 offen
buffer_load_dwordx4 v[20:23], v3, s[8:11], 0 offen offset:16
buffer_load_dwordx4 v[24:27], v1, s[8:11], 0 offen offset:32
s_add_u32 s12, s4, s22
s_addc_u32 s13, s5, 0
s_add_u32 s12, s12, {WS_KC}
s_addc_u32 s13, s13, 0
s_mov_b32 s14, {2*KC_STRIDE}
s_mov_b32 s15, 0x00020000
s_add_u32 s36, s4, {WS_MODP}
s_addc_u32 s37, s5, 0
s_mov_b32 s38, {4*2688*4}
s_mov_b32 s39, 0x00020000
s_add_u32 s40, s4, {WS_MOD}
s_addc_u32 s41, s5, 0
s_mov_b32 s42, 5376
s_mov_b32 s43, 0x00020000
v_and_b32 v5, 63, v0
v_lshrrev_b32 v6, 1, v5
v_and_b32 v7, 1, v5
v_mul_u32_u24 v13, 448, v6
v_add_u32 v13, v13, v7
s_lshl_b32 s23, s2, 1
v_add_u32 v13, s23, v13
v_lshlrev_b32 v14, 2, v13
v_cmp_gt_u32 vcc, 12, v5
v_cndmask_b32 v14, v4, v14, vcc
buffer_load_dword v152, v14, s[36:39], 0 offen
s_movk_i32 s23, {2688*4}
buffer_load_dword v153, v14, s[36:39], s23 offen
s_movk_i32 s23, {2*2688*4}
buffer_load_dword v154, v14, s[36:39], s23 offen
s_mov_b32 s23, {3*2688*4}
buffer_load_dword v155, v14, s[36:39], s23 offen
v_lshlrev_b32 v13, 1, v13
v_cmp_gt_u32 vcc, 12, v0
v_cndmask_b32 v13, v4, v13, vcc
s_add_u32 s26, s6, s21
s_addc_u32 s27, s7, 0
s_load_dword s30, s[26:27], 0
s_add_u32 s16, s4, s20
s_addc_u32 s17, s5, 0
s_add_u32 s16, s16, {WS_YYT}
s_addc_u32 s17, s17, 0
s_mov_b32 s18, 8192
s_mov_b32 s19, 0x00020000
v_and_b32 v5, 255, v0
v_lshrrev_b32 v6, 8, v0
v_mul_u32_u24 v7, {KC_STRIDE}, v6
v_lshlrev_b32 v8, 3, v5""")
    for e in range(0, 8, 2):
        a(f"""v_add_u32 v9, {e}, v8
v_add_u32 v10, {e+1}, v8
v_cvt_f32_u32 v11, v9
v_cvt_f32_u32 v12, v10
v_cvt_pk_bf16_f32 v11, v11, v12
v_lshrrev_b32 v12, 16, v11
v_and_b32 v11, 0xffff, v11
v_subrev_u32 v11, 17024, v11
v_subrev_u32 v12, 17024, v12
v_cmp_gt_u32 vcc, 128, v8
v_cndmask_b32 v11, v11, v9, vcc
v_cndmask_b32 v12, v12, v10, vcc
v_lshl_add_u32 v11, v11, 2, v7
v_lshl_add_u32 v12, v12, 2, v7
buffer_load_dword v{28+e}, v11, s[12:15], 0 offen
buffer_load_dword v{29+e}, v12, s[12:15], 0 offen""")
    a(f"""v_mov_b32 v36, 0
v_mov_b32 v37, 0
v_mov_b32 v38, 0
v_mov_b32 v39, 0
v_lshrrev_b32 v9, 4, v0
v_mul_u32_u24 v9, {UCS}, v9
v_and_b32 v10, 15, v0
v_lshl_add_u32 v9, v10, 4, v9
v_cmp_gt_u32 vcc, 256, v0
s_and_saveexec_b64 s[32:33], vcc
ds_write_b128 v9, v[36:39] offset:4096
s_mov_b64 exec, s[32:33]
v_mul_u32_u24 v9, {KHD}, v6
v_lshl_add_u32 v9, v5, 4, v9
v_add_u32 v9, {KH}, v9
v_cmp_gt_u32 vcc, 15, v5
s_and_saveexec_b64 s[32:33], vcc
ds_write_b128 v9, v[36:39]
ds_write_b128 v9, v[36:39] offset:4352
s_mov_b64 exec, s[32:33]
s_waitcnt lgkmcnt(0)""")
    a(f"""s_waitcnt vmcnt(8)
v_add_f32 v152, v152, v153
v_add_f32 v154, v154, v155
v_add_f32 v152, v152, v154
v_cvt_pk_bf16_f32 v152, v152, v152
buffer_store_short v152, v13, s[40:43], 0 offen
v_and_b32 v152, 0xffff0000, v152
v_readlane_b32 s28, v152, 0
v_readlane_b32 s31, v152, 1
v_readlane_b32 s29, v152, 2
v_readlane_b32 s34, v152, 3
v_mov_b32 v42, s28
v_mov_b32 v43, s31
v_add_f32 v40, 1.0, s29
v_add_f32 v41, 1.0, s34
v_cvt_pk_bf16_f32 v40, v40, v41
v_and_b32 v41, 0xffff0000, v40
v_lshlrev_b32 v40, 16, v40
v_cmp_le_u32 vcc, 1, v0
v_cndmask_b32 v44, 0, v42, vcc
v_cndmask_b32 v45, 0, v43, vcc
v_cmp_le_u32 vcc, 2, v0
v_cndmask_b32 v46, 0, v42, vcc
v_cndmask_b32 v47, 0, v43, vcc
s_lshl_b32 s31, s30, 16
s_and_b32 s30, s30, 0xffff0000
v_mov_b32 v48, s31
v_mov_b32 v49, s30""")
    a.stamp()
    H = 52
    for tau in range(1, 12):
        src = 16 + tau; e = H + 2*tau
        sa = (46, 44, 42)[tau // 4]
        a(f"""v_lshlrev_b32 v{e}, 16, v{src}
v_and_b32 v{e+1}, 0xffff0000, v{src}
v_pk_mul_f32 v[{e}:{e+1}], v[{e}:{e+1}], v[40:41]
v_cvt_pk_bf16_f32 v{e}, v{e}, v{e+1}
v_and_b32 v{e+1}, 0xffff0000, v{e}
v_lshlrev_b32 v{e}, 16, v{e}
v_pk_add_f32 v[{e}:{e+1}], v[{e}:{e+1}], v[{sa}:{sa+1}]""")
    a(f"""v_and_b32 v9, 1, v0
v_sub_u32 v9, 1, v9
v_mul_u32_u24 v9, {4*UCS}, v9
v_lshrrev_b32 v10, 1, v0
v_sub_u32 v10, 255, v10
v_lshl_add_u32 v9, v10, 4, v9""")
    W = 80
    for d in range(2):
        for sg in range(4):
            q = W + 16*d + 4*sg
            for k in range(4):
                m = sg + 2*k
                a(f"v_cvt_pk_bf16_f32 v{q+k}, v{H+2*(11-m)+d}, v{H+2*(10-m)+d}")
            a(f"ds_write_b128 v9, v[{q}:{q+3}] offset:{sg*UCS + d*UCD}")
    for k in range(4):
        e = H + 2*(8+k); o = 144 + 2*k
        a(f"""v_cvt_pk_bf16_f32 v{o}, v{e}, v{e+1}
v_and_b32 v{o+1}, 0xffff0000, v{o}
v_lshlrev_b32 v{o}, 16, v{o}
v_pk_mul_f32 v[{o}:{o+1}], v[{o}:{o+1}], v[48:49]
v_cvt_pk_bf16_f32 v{o}, v{o}, v{o+1}
v_and_b32 v{o+1}, 0xffff0000, v{o}
v_lshlrev_b32 v{o}, 16, v{o}""")
    a.stamp()
    a("s_waitcnt vmcnt(0)")
    a.stamp()
    for k in range(4):
        e = 28 + 2*k
        a(f"""v_cvt_pk_bf16_f32 v{112+k}, v{e}, v{e+1}
v_lshlrev_b32 v120, 16, v{112+k}
v_and_b32 v121, 0xffff0000, v{112+k}
v_pk_add_f32 v[{e}:{e+1}], v[{e}:{e+1}], v[120:121] neg_lo:[0,1] neg_hi:[0,1]
v_cvt_pk_bf16_f32 v{116+k}, v{e}, v{e+1}""")
    a(f"""v_mul_u32_u24 v9, {KHD}, v6
v_lshl_add_u32 v9, v5, 4, v9
v_add_u32 v9, {KH+240}, v9
ds_write_b128 v9, v[112:115]
ds_write_b128 v9, v[116:119] offset:4352""")
    a(f"""v_and_b32 v1, 63, v0
v_lshrrev_b32 v2, 6, v0
v_and_b32 v3, 3, v2
v_lshrrev_b32 v4, 4, v1
v_and_b32 v5, 7, v1
v_bfe_u32 v7, v1, 3, 1
v_sub_u32 v8, 7, v5
v_mul_u32_u24 v8, {UCS}, v8
v_mul_u32_u24 v9, {UCD}, v6
v_add_u32 v8, v8, v9
v_lshl_add_u32 v8, v4, 4, v8
v_lshlrev_b32 v9, 8, v7
v_sub_u32 v8, v8, v9
v_lshl_add_u32 v8, v3, 7, v8
v_add_u32 v8, 256, v8
v_and_b32 v10, 15, v1
v_add_u32 v11, v10, v4
v_mul_u32_u24 v9, {KHD}, v6
v_lshl_add_u32 v9, v11, 4, v9
v_lshl_add_u32 v9, v3, 7, v9
v_add_u32 v9, {KH}, v9""")
    ACC = 112
    for r in range(32): a(f"v_mov_b32 v{ACC+r}, 0")
    a("s_waitcnt lgkmcnt(0)\ns_barrier")
    a.stamp()
    dq = DSQ(a)
    AF = (16, 48); BF = 80
    def rdA(e, b1):
        r = AF[e] + 4*b1
        dq.issue(f"ds_read_b128 v[{r}:{r+3}], v8 offset:{64*e + 512*(7-b1)}", ("A", e, b1))
    def rdB(e, k1):
        r = BF + 8*((e*8+k1) % 3)
        dq.issue(f"ds_read_b128 v[{r}:{r+3}], v9 offset:{64*e + 512*k1}", ("Bh", e, k1))
        dq.issue(f"ds_read_b128 v[{r+4}:{r+7}], v9 offset:{64*e + 512*k1 + 4352}", ("Bl", e, k1))
    rdB(0, 0)
    for b1 in range(8): rdA(0, b1)
    rdB(0, 1)
    seq = [(e, k1) for e in range(2) for k1 in range(8)]
    for si, (e, k1) in enumerate(seq):
        r = BF + 8*(si % 3)
        if si + 2 < len(seq): rdB(*seq[si+2])
        if e == 0: rdA(1, k1)
        dq.wait(("Bl", e, k1))
        for b1 in range(8 - k1):
            dq.wait(("A", e, b1))
            t = k1 + b1; c = ACC + 4*t; ar = AF[e] + 4*b1
            a(f"v_mfma_f32_16x16x32_bf16 v[{c}:{c+3}], v[{ar}:{ar+3}], v[{r}:{r+3}], v[{c}:{c+3}]")
            a(f"v_mfma_f32_16x16x32_bf16 v[{c}:{c+3}], v[{ar}:{ar+3}], v[{r+4}:{r+7}], v[{c}:{c+3}]")
    a.stamp()
    a(f"""v_lshlrev_b32 v8, 15, v6
v_lshl_add_u32 v8, v3, 13, v8
v_lshl_add_u32 v8, v10, 5, v8
v_lshrrev_b32 v9, 1, v4
v_lshl_add_u32 v8, v9, 9, v8
v_and_b32 v9, 1, v4
v_lshl_add_u32 v8, v9, 4, v8
s_waitcnt lgkmcnt(0)
s_barrier""")
    for t in range(8):
        a(f"ds_write_b128 v8, v[{ACC+4*t}:{ACC+4*t+3}] offset:{1024*t}")
    a("v_lshlrev_b32 v1, 4, v0\ns_waitcnt lgkmcnt(0)\ns_barrier")
    for d in range(2):
        for q in range(4):
            r = 16 + 16*d + 4*q
            a(f"ds_read_b128 v[{r}:{r+3}], v1 offset:{32768*d + 8192*q}")
    a("s_waitcnt lgkmcnt(0)")
    for d in range(2):
        for k in range(4):
            r = 16 + 16*d + k
            a(f"v_add_f32 v{r}, v{r}, v{r+4}\nv_add_f32 v{r+8}, v{r+8}, v{r+12}\nv_add_f32 v{r}, v{r}, v{r+8}")
    for k in range(4):
        o = 144 + 2*k
        a(f"""v_cvt_pk_bf16_f32 v50, v{16+k}, v{32+k}
v_and_b32 v51, 0xffff0000, v50
v_lshlrev_b32 v50, 16, v50
v_pk_add_f32 v[50:51], v[50:51], v[{o}:{o+1}]
v_cvt_pk_bf16_f32 v{52+k}, v50, v51""")
    a("""buffer_store_dwordx4 v[52:55], v1, s[16:19], 0 offen""")
    a.stamp(); a.dump_stamps(1)
    a("""K2_end:
s_endpgm""")
    return a.finalize(), 156
```

```python
from gen import *

def unpack(a, lo, hi, src):
    a(f"v_lshlrev_b32 v{lo}, 16, v{src}\nv_and_b32 v{hi}, 0xffff0000, v{src}")
def rnd_pair(a, e):
    a(f"v_cvt_pk_bf16_f32 v{e}, v{e}, v{e+1}\nv_and_b32 v{e+1}, 0xffff0000, v{e}\nv_lshlrev_b32 v{e}, 16, v{e}")

def gen_k3():
    a = Asm()
    a.stamp()
    a(f"""s_cmp_ge_u32 s2, 256
s_cbranch_scc1 K3_end
s_load_dwordx2 s[4:5], s[0:1], {KA['ws']}
s_load_dwordx2 s[6:7], s[0:1], {KA['x']}
s_load_dwordx2 s[8:9], s[0:1], {KA['wr']}
s_load_dwordx2 s[10:11], s[0:1], {KA['out']}
v_and_b32 v1, 7, v0
v_bfe_u32 v2, v0, 3, 3
v_lshrrev_b32 v3, 6, v0
v_lshl_add_u32 v4, v3, 3, v1
s_lshl_b32 s12, s2, 3
v_add_u32 v5, s12, v2
s_movk_i32 s13, 896
v_mul_lo_u32 v6, v5, s13
v_lshl_add_u32 v6, v4, 4, v6
v_lshlrev_b32 v7, 15, v4
v_lshl_add_u32 v7, v5, 2, v7
v_lshlrev_b32 v8, 4, v4
s_waitcnt lgkmcnt(0)""")
    srd(a, 16, 6, XSZ)
    srd(a, 20, 4, XSZ, WS_YYT)
    srd(a, 24, 4, 5376, WS_MOD)
    srd(a, 28, 8, 896)
    srd(a, 32, 10, XSZ)
    srd(a, 36, 4, XSZ, WS_X1)
    srd(a, 40, 4, 0x6000, WS_R)
    a("buffer_load_dwordx4 v[12:15], v6, s[16:19], 0 offen")
    for q in range(4):
        a(f"s_mov_b32 s14, {8192*q}\nbuffer_load_dword v{16+q}, v7, s[20:23], s14 offen")
    a(f"""buffer_load_dwordx4 v[20:23], v8, s[24:27], 0 offen offset:1792
buffer_load_dwordx4 v[24:27], v8, s[24:27], 0 offen offset:3584
buffer_load_dwordx4 v[28:31], v8, s[24:27], 0 offen offset:2688
s_movk_i32 s14, 4480
buffer_load_dwordx4 v[32:35], v8, s[24:27], s14 offen
buffer_load_dwordx4 v[36:39], v8, s[28:31], 0 offen
s_mov_b32 s44, {f2u(1.0/64)}
s_mov_b32 s45, {f2u(1.0/7)}
s_mov_b32 s46, {f2u(64.0)}
s_mov_b32 s47, {f2u(1.0/448)}
s_mov_b32 s48, {f2u(1e-5)}
v_lshlrev_b32 v9, 6, v2
v_lshl_add_u32 v10, v3, 3, v9
s_waitcnt vmcnt(4)""")
    a.stamp()
    X = 40
    for q in range(4):
        e = X + 2*q
        unpack(a, e, e+1, 16+q)
        unpack(a, 60, 61, 20+q)
        a(f"v_pk_mul_f32 v[{e}:{e+1}], v[{e}:{e+1}], v[60:61]")
        rnd_pair(a, e)
        unpack(a, 60, 61, 12+q)
        a(f"v_pk_add_f32 v[{e}:{e+1}], v[{e}:{e+1}], v[60:61]")
        a(f"v_cvt_pk_bf16_f32 v{48+q}, v{e}, v{e+1}")
        unpack(a, e, e+1, 48+q)
    a("buffer_store_dwordx4 v[48:51], v6, s[36:39], 0 offen")
    a(f"""v_add_f32 v52, v40, v41
v_add_f32 v53, v42, v43
v_add_f32 v54, v44, v45
v_add_f32 v55, v46, v47
v_add_f32 v52, v52, v53
v_add_f32 v54, v54, v55
v_add_f32 v52, v52, v54""")
    sum8lanes(a, 52, 53)
    a("v_mul_f32 v52, s44, v52")
    a("v_sub_f32 v54, v40, v52\nv_mul_f32 v53, v54, v54")
    for i in range(1, 8):
        a(f"v_sub_f32 v54, v{40+i}, v52\nv_fmac_f32 v53, v54, v54")
    sum8lanes(a, 53, 54)
    a(f"""ds_write_b64 v10, v[52:53]
s_waitcnt lgkmcnt(0)
s_barrier
ds_read_b128 v[64:67], v9
ds_read_b128 v[68:71], v9 offset:16
ds_read_b128 v[72:75], v9 offset:32
ds_read_b64 v[76:77], v9 offset:48""")
    a.stamp()
    a("s_waitcnt vmcnt(1)")
    for q in range(4):
        e = 80 + 2*q
        unpack(a, e, e+1, 24+q)
        a(f"v_pk_add_f32 v[{e}:{e+1}], v[{e}:{e+1}], 1.0 op_sel_hi:[1,0]")
        rnd_pair(a, e)
        unpack(a, 88+2*q, 89+2*q, 28+q)
    a(f"""s_waitcnt lgkmcnt(0)
v_add_f32 v52, v64, v66
v_add_f32 v53, v68, v70
v_add_f32 v54, v72, v74
v_add_f32 v52, v52, v76
v_add_f32 v52, v52, v53
v_add_f32 v52, v52, v54
v_mul_f32 v52, s45, v52
v_add_f32 v53, v65, v67
v_add_f32 v54, v69, v71
v_add_f32 v55, v73, v75
v_add_f32 v53, v53, v77
v_add_f32 v53, v53, v54
v_add_f32 v53, v53, v55
v_sub_f32 v55, v64, v52
v_mul_f32 v54, v55, v55""")
    for i in range(1, 7):
        a(f"v_sub_f32 v55, v{64+2*i}, v52\nv_fmac_f32 v54, v55, v55")
    a("v_fmac_f32 v53, s46, v54\nv_mul_f32 v53, s47, v53")
    bf16r(a, 56, 52)
    bf16r(a, 53, 53)
    a("v_add_f32 v53, s48, v53")
    bf16r(a, 53, 53)
    a("v_sqrt_f32 v53, v53")
    bf16r(a, 53, 53)
    a("v_rcp_f32 v57, v53\nv_mov_b32 v58, v56\nv_mov_b32 v59, v57")
    a("v_mov_b32 v100, v56\nv_mov_b32 v101, v56\nv_mov_b32 v102, v57\nv_mov_b32 v103, v57")
    for q in range(4):
        e = 104 + 2*q; x = X + 2*q
        a(f"v_pk_add_f32 v[{e}:{e+1}], v[{x}:{x+1}], v[100:101] neg_lo:[0,1] neg_hi:[0,1]")
        rnd_pair(a, e)
        a(f"v_pk_mul_f32 v[{e}:{e+1}], v[{e}:{e+1}], v[102:103]")
        rnd_pair(a, e)
        a(f"v_pk_mul_f32 v[{e}:{e+1}], v[{e}:{e+1}], v[{80+2*q}:{81+2*q}]")
        rnd_pair(a, e)
        a(f"v_pk_add_f32 v[{e}:{e+1}], v[{e}:{e+1}], v[{88+2*q}:{89+2*q}]")
        rnd_pair(a, e)
        unpack(a, 60, 61, 36+q)
        if q == 0: a(f"v_mul_f32 v62, v{e}, v60\nv_mul_f32 v63, v{e+1}, v61")
        else: a(f"v_fmac_f32 v62, v{e}, v60\nv_fmac_f32 v63, v{e+1}, v61")
        unpack(a, 60, 61, 32+q)
        a(f"v_pk_mul_f32 v[60:61], v[60:61], v[{e}:{e+1}]")
        rnd_pair(a, 60)
        a(f"v_pk_add_f32 v[60:61], v[60:61], v[{x}:{x+1}]")
        a(f"v_cvt_pk_bf16_f32 v{112+q}, v60, v61")
    a("buffer_store_dwordx4 v[112:115], v6, s[32:35], 0 offen")
    a.stamp()
    a("v_add_f32 v62, v62, v63")
    sum8lanes(a, 62, 63)
    a(f"""v_lshlrev_b32 v9, 5, v2
v_lshl_add_u32 v10, v3, 2, v9
ds_write_b32 v10, v62 offset:512
s_waitcnt lgkmcnt(0)
s_barrier
v_cmp_gt_u32 vcc, 64, v0
s_and_saveexec_b64 s[50:51], vcc
s_cbranch_execz K3_end
ds_read_b128 v[64:67], v9 offset:512
ds_read_b96 v[68:70], v9 offset:528
v_cmp_eq_u32 vcc, 0, v1
v_lshlrev_b32 v11, 2, v5
v_lshlrev_b32 v12, 3, v5
v_bfrev_b32 v13, 1
v_cndmask_b32 v11, v13, v11, vcc
v_cndmask_b32 v12, v13, v12, vcc
s_movk_i32 s14, 0x2000
s_waitcnt lgkmcnt(0)
v_add_f32 v64, v64, v65
v_add_f32 v66, v66, v67
v_add_f32 v68, v68, v69
v_add_f32 v64, v64, v66
v_add_f32 v68, v68, v70
v_add_f32 v64, v64, v68""")
    bf16r(a, 64, 64)
    a(f"""buffer_store_dword v64, v11, s[40:43], 0 offen
buffer_store_dwordx2 v[58:59], v12, s[40:43], s14 offen""")
    a.stamp(); a.dump_stamps(2)
    a("""K3_end:
s_endpgm""")
    return a.finalize(), 116
```

```python
from gen import *
from gen_k3 import unpack, rnd_pair

class Pool:
    def __init__(self, regs): self.free = list(regs)
    def get(self): return self.free.pop(0)
    def put(self, r): self.free.append(r)

def CE(a, L, i, j, pool):
    hi = pool.get()
    a(f"v_max_u32 v{hi}, v{L[i]}, v{L[j]}\nv_min_u32 v{L[j]}, v{L[i]}, v{L[j]}")
    pool.put(L[i]); L[i] = hi

SORT8 = [(0,1),(2,3),(4,5),(6,7),(0,2),(1,3),(4,6),(5,7),(1,2),(5,6),(0,4),(3,7),(1,5),(2,6),(1,4),(3,6),(2,4),(3,5),(3,4)]
def bitonic_fix(a, L, pool):
    for (i, j) in [(0,4),(1,5),(2,6),(3,7),(0,2),(1,3),(4,6),(5,7),(0,1),(2,3),(4,5),(6,7)]:
        CE(a, L, i, j, pool)
def merge_dpp(a, L, pool, dpp, fix=True):
    N = [pool.get() for _ in range(8)]
    for i in range(8):
        a(f"v_max_u32 v{N[i]}, v{L[7-i]}, v{L[i]} {dpp}")
    for r in L: pool.put(r)
    L[:] = N
    if fix: bitonic_fix(a, L, pool)

def silu_inplace(a, v, t, s_nl2e):
    a(f"""v_mul_f32 v{t}, s{s_nl2e}, v{v}
v_exp_f32 v{t}, v{t}
v_add_f32 v{t}, 1.0, v{t}
v_rcp_f32 v{t}, v{t}
v_mul_f32 v{v}, v{v}, v{t}""")

def gen_k4():
    a = Asm()
    a.stamp()
    a(f"""s_cmp_ge_u32 s2, 112
s_cbranch_scc1 K4_end
s_load_dwordx2 s[4:5], s[0:1], {KA['ws']}
s_load_dwordx4 s[8:11], s[0:1], {KA['wg']}
s_load_dwordx2 s[6:7], s[0:1], {KA['wd']}
v_and_b32 v1, 63, v0
v_and_b32 v2, 15, v1
v_lshrrev_b32 v3, 4, v1
v_lshrrev_b32 v4, 6, v0
v_readfirstlane_b32 s3, v4
v_lshlrev_b32 v5, 5, v0
s_lshl_b32 s12, s2, 5
v_lshlrev_b32 v6, 3, v4
v_add_u32 v6, v6, v3
s_movk_i32 s13, {8*3584}
v_mul_lo_u32 v6, v6, s13
v_lshl_add_u32 v6, v2, 1, v6
v_add_u32 v6, s12, v6
s_waitcnt lgkmcnt(0)""")
    srd(a, 16, 4, 0x6000, WS_R)
    srd(a, 20, 8, 448*3584)
    srd(a, 24, 10, 448*3584)
    srd(a, 28, 4, 5376, WS_MOD)
    srd(a, 32, 4, XSZ, WS_X1)
    srd(a, 36, 4, 8*1792*2, WS_ACT)
    srd(a, 40, 4, 256+2*7168, WS_SEL)
    srd(a, 52, 6, 1792*896)
    srd(a, 56, 4, 112*14336, WS_PART)
    a("""s_cmp_ge_u32 s3, 4
s_cbranch_scc1 K4_noR
buffer_load_dwordx4 v[8:11], v5, s[16:19], 0 offen
buffer_load_dwordx4 v[12:15], v5, s[16:19], 0 offen offset:16
K4_noR:""")
    for mat in range(2):
        for s in range(2):
            for jj in range(8):
                r = 128 + 16*mat + 8*s + jj
                a(f"s_mov_b32 s14, {(32*s+jj)*3584}\nbuffer_load_ushort v{r}, v6, s[{20+4*mat}:{23+4*mat}], s14 offen")
    a(f"""v_lshlrev_b32 v7, 7, v4
v_lshl_add_u32 v7, v3, 4, v7
buffer_load_dwordx4 v[80:83], v7, s[28:31], 0 offen offset:3584
buffer_load_dwordx4 v[84:87], v7, s[28:31], 0 offen offset:3648
buffer_load_dwordx4 v[88:91], v7, s[28:31], 0 offen offset:2688
buffer_load_dwordx4 v[92:95], v7, s[28:31], 0 offen offset:2752
v_lshlrev_b32 v176, 1, v0
s_mul_i32 s60, s2, {16*896}""")
    for i in range(16):
        a(f"s_add_u32 s14, s60, {896*i}\nbuffer_load_ushort v{160+i}, v176, s[52:55], s14 offen")
    a(f"""s_cmp_ge_u32 s3, 4
s_cbranch_scc1 K4_bar1
s_waitcnt vmcnt(52)
v_lshlrev_b32 v16, 3, v0
v_sub_u32 v16, 2047, v16""")
    a.stamp()
    for i in range(8):
        a(f"""v_ashrrev_i32 v17, 31, v{8+i}
v_or_b32 v17, 0x80000000, v17
v_xor_b32 v{8+i}, v{8+i}, v17
v_and_b32 v{8+i}, 0xffff0000, v{8+i}
v_subrev_u32 v17, {i}, v16
v_or_b32 v{8+i}, v{8+i}, v17""")
    L = list(range(8, 16)); pool = Pool(range(18, 40))
    for (i, j) in SORT8: CE(a, L, i, j, pool)
    for dpp in ("quad_perm:[1,0,3,2] row_mask:0xf bank_mask:0xf", "quad_perm:[2,3,0,1] row_mask:0xf bank_mask:0xf",
                "row_half_mirror row_mask:0xf bank_mask:0xf", "row_mirror row_mask:0xf bank_mask:0xf",
                "row_bcast:15 row_mask:0xa bank_mask:0xf", "row_bcast:31 row_mask:0xc bank_mask:0xf"):
        merge_dpp(a, L, pool, dpp)
    a(f"""v_lshlrev_b32 v17, 5, v4
v_cmp_eq_u32 vcc, 63, v1
s_and_saveexec_b64 s[44:45], vcc""")
    for i in range(8):
        a(f"ds_write_b32 v17, v{L[i]} offset:{4*i}")
    a("""s_mov_b64 exec, s[44:45]
s_waitcnt lgkmcnt(0)
K4_bar1:
s_barrier
v_and_b32 v17, 3, v1
v_lshlrev_b32 v17, 5, v17
ds_read_b128 v[8:11], v17
ds_read_b128 v[12:15], v17 offset:16
s_waitcnt lgkmcnt(0)""")
    L = list(range(8, 16)); pool = Pool(range(18, 40))
    merge_dpp(a, L, pool, "quad_perm:[1,0,3,2] row_mask:0xf bank_mask:0xf")
    merge_dpp(a, L, pool, "quad_perm:[2,3,0,1] row_mask:0xf bank_mask:0xf")
    a.stamp()
    a("""v_and_b32 v16, 1, v1
v_cmp_eq_u32 s[46:47], 1, v16
v_and_b32 v16, 2, v1
v_cmp_eq_u32 s[48:49], 2, v16
v_and_b32 v16, 4, v1
v_cmp_eq_u32 s[50:51], 4, v16""")
    for i in range(4): a(f"v_cndmask_b32 v{40+i}, v{L[2*i]}, v{L[2*i+1]}, s[46:47]")
    a("""v_cndmask_b32 v40, v40, v41, s[48:49]
v_cndmask_b32 v42, v42, v43, s[48:49]
v_cndmask_b32 v40, v40, v42, s[50:51]
v_and_b32 v41, 0x7ff, v40
v_sub_u32 v41, 2047, v41
s_movk_i32 s13, 896
v_mul_lo_u32 v42, v41, s13
v_add_u32 v42, v42, v7
v_lshlrev_b32 v43, 3, v41
s_movk_i32 s14, 0x2000
buffer_load_dwordx4 v[44:47], v42, s[32:35], 0 offen
buffer_load_dwordx4 v[48:51], v42, s[32:35], 0 offen offset:64
buffer_load_dwordx2 v[52:53], v43, s[16:19], s14 offen""")
    a(f"""s_mov_b32 s15, {LOG2E | 0x80000000}
v_and_b32 v54, 0xffff0000, v40
v_ashrrev_i32 v55, 31, v54
v_not_b32 v55, v55
v_or_b32 v55, 0x80000000, v55
v_xor_b32 v54, v54, v55
v_and_b32 v54, 0xffff0000, v54
v_mul_f32 v55, s15, v54
v_exp_f32 v55, v55
v_add_f32 v55, 1.0, v55
v_rcp_f32 v55, v55""")
    bf16r(a, 55, 55)
    a(f"""v_lshlrev_b32 v56, 2, v0
v_bfrev_b32 v57, 1
v_cmp_gt_u32 vcc, 8, v0
v_cndmask_b32 v56, v57, v56, vcc
s_cmp_lg_u32 s2, 0
s_cbranch_scc1 K4_nosel
buffer_store_dword v41, v56, s[40:43], 0 offen
buffer_store_dword v55, v56, s[40:43], 0 offen offset:32
K4_nosel:""")
    a("s_waitcnt vmcnt(3)")
    a.stamp()
    for q in range(16):
        a(f"v_lshl_or_b32 v{64+q}, v{129+2*q}, 16, v{128+2*q}")
    for q in range(8):
        e = 96 + 2*q
        unpack(a, e, e+1, 80+q)
        a(f"v_pk_add_f32 v[{e}:{e+1}], v[{e}:{e+1}], 1.0 op_sel_hi:[1,0]")
        rnd_pair(a, e)
        unpack(a, 112+2*q, 113+2*q, 88+q)
    a("s_waitcnt vmcnt(0)")
    a.stamp()
    a("""v_and_b32 v57, 7, v1
s_movk_i32 s13, 896
v_mul_lo_u32 v57, v57, s13
v_add_u32 v57, v57, v7
v_bfrev_b32 v56, 1
v_cmp_gt_u32 vcc, 8, v2
v_cndmask_b32 v57, v56, v57, vcc
s_cmp_lg_u32 s2, 0
s_cbranch_scc1 K4_nox1
buffer_store_dwordx4 v[44:47], v57, s[40:43], 0 offen offset:256
buffer_store_dwordx4 v[48:51], v57, s[40:43], 0 offen offset:320
K4_nox1:
s_nop 1
v_mov_b32 v58, v52
v_mov_b32 v59, v52
v_mov_b32 v60, v53
v_mov_b32 v61, v53""")
    for q in range(8):
        unpack(a, 62, 63, 44+q)
        a("v_pk_add_f32 v[62:63], v[62:63], v[58:59] neg_lo:[0,1] neg_hi:[0,1]")
        rnd_pair(a, 62)
        a("v_pk_mul_f32 v[62:63], v[62:63], v[60:61]")
        rnd_pair(a, 62)
        a(f"v_pk_mul_f32 v[62:63], v[62:63], v[{96+2*q}:{97+2*q}]")
        rnd_pair(a, 62)
        a(f"v_pk_add_f32 v[62:63], v[62:63], v[{112+2*q}:{113+2*q}]")
        a(f"v_cvt_pk_bf16_f32 v{44+q}, v62, v63")
    a("""s_movk_i32 s13, 7168
s_cmp_lg_u32 s2, 0
s_cbranch_scc1 K4_noh2
buffer_store_dwordx4 v[44:47], v57, s[40:43], s13 offen offset:256
buffer_store_dwordx4 v[48:51], v57, s[40:43], s13 offen offset:320
K4_noh2:
v_mfma_f32_16x16x32_bf16 v[8:11], v[44:47], v[64:67], 0
v_mfma_f32_16x16x32_bf16 v[12:15], v[44:47], v[72:75], 0
v_mfma_f32_16x16x32_bf16 v[8:11], v[48:51], v[68:71], v[8:11]
v_mfma_f32_16x16x32_bf16 v[12:15], v[48:51], v[76:79], v[12:15]
v_lshlrev_b32 v17, 11, v4
v_lshl_add_u32 v17, v1, 4, v17
ds_write_b128 v17, v[8:11] offset:256
ds_write_b128 v17, v[12:15] offset:1280
s_waitcnt lgkmcnt(0)
s_barrier
v_cmp_gt_u32 vcc, 32, v0
s_and_saveexec_b64 s[44:45], vcc
s_cbranch_execz K4_join
v_lshlrev_b32 v17, 4, v0""")
    for m in range(7):
        a(f"ds_read_b128 v[{64+8*m}:{67+8*m}], v17 offset:{256+2048*m}\nds_read_b128 v[{68+8*m}:{71+8*m}], v17 offset:{1280+2048*m}")
    a("s_waitcnt lgkmcnt(0)")
    for k in range(8):
        a(f"""v_add_f32 v{64+k}, v{64+k}, v{72+k}
v_add_f32 v{80+k}, v{80+k}, v{88+k}
v_add_f32 v{96+k}, v{96+k}, v{104+k}
v_add_f32 v{64+k}, v{64+k}, v{112+k}
v_add_f32 v{80+k}, v{80+k}, v{96+k}
v_add_f32 v{64+k}, v{64+k}, v{80+k}""")
    for k in (64, 66, 68, 70): rnd_pair(a, k)
    for j in range(4): silu_inplace(a, 64+j, 72, 15)
    for k in (64, 66): rnd_pair(a, k)
    a("""v_pk_mul_f32 v[64:65], v[64:65], v[68:69]
v_pk_mul_f32 v[66:67], v[66:67], v[70:71]""")
    rnd_pair(a, 64); rnd_pair(a, 66)
    a("""v_lshlrev_b32 v17, 5, v2
v_lshl_add_u32 v17, v3, 4, v17
ds_write_b128 v17, v[64:67]
s_waitcnt lgkmcnt(0)
K4_join:
s_mov_b64 exec, s[44:45]
s_barrier
v_mov_b32 v17, 0""")
    a.stamp()
    for i in range(16):
        a(f"ds_read_b128 v[{64+8*(i%8)}:{67+8*(i%8)}], v17 offset:{32*i}\nds_read_b128 v[{68+8*(i%8)}:{71+8*(i%8)}], v17 offset:{32*i+16}")
        a(f"v_lshlrev_b32 v{160+i}, 16, v{160+i}")
        if i % 8 == 7:
            for k in range(8):
                ii = i - 7 + k
                a(f"s_waitcnt lgkmcnt({14-2*k})")
                for tp in range(4):
                    src = 64 + 8*k + 2*tp
                    wb = 160 + (ii & ~1)
                    if ii == 0:
                        a(f"v_pk_mul_f32 v[{8+2*tp}:{9+2*tp}], v[{src}:{src+1}], v[{wb}:{wb+1}] op_sel_hi:[1,0]")
                    elif ii & 1:
                        a(f"v_pk_fma_f32 v[{8+2*tp}:{9+2*tp}], v[{src}:{src+1}], v[{wb}:{wb+1}], v[{8+2*tp}:{9+2*tp}] op_sel:[0,1,0] op_sel_hi:[1,1,1]")
                    else:
                        a(f"v_pk_fma_f32 v[{8+2*tp}:{9+2*tp}], v[{src}:{src+1}], v[{wb}:{wb+1}], v[{8+2*tp}:{9+2*tp}] op_sel_hi:[1,0,1]")
    a("s_mul_i32 s60, s2, 14336\nv_lshlrev_b32 v17, 2, v0")
    for t in range(8):
        a(f"s_add_u32 s14, s60, {1792*t}\nbuffer_store_dword v{8+t}, v17, s[56:59], s14 offen")
    a.stamp(); a.dump_stamps(3)
    a("""K4_end:
s_endpgm""")
    return a.finalize(), 180


def gen_k5():
    a = Asm()
    a.stamp()
    a(f"""s_cmp_ge_u32 s2, 56
s_cbranch_scc1 K5_end
s_load_dwordx2 s[4:5], s[0:1], {KA['ws']}
s_load_dwordx2 s[10:11], s[0:1], {KA['out']}
s_mul_i32 s12, s2, 37
s_lshr_b32 s12, s12, 8
s_mul_i32 s13, s12, 7
s_sub_u32 s13, s2, s13
v_and_b32 v1, 63, v0
v_lshrrev_b32 v2, 6, v0
s_mov_b32 s14, {28*14336}
v_mul_lo_u32 v3, v2, s14
v_lshl_add_u32 v3, v1, 2, v3
s_mul_i32 s15, s12, 1792
s_lshl_b32 s16, s13, 8
s_add_u32 s15, s15, s16
v_add_u32 v3, s15, v3
s_lshl_b32 s16, s13, 7
v_lshl_add_u32 v4, v1, 1, s16
s_mul_i32 s17, s12, 896
s_lshl_b32 s18, s12, 2
s_waitcnt lgkmcnt(0)""")
    srd(a, 20, 4, 112*14336, WS_PART)
    srd(a, 28, 4, 5376, WS_MOD)
    srd(a, 40, 4, 256+2*7168, WS_SEL)
    srd(a, 44, 10, XSZ)
    a(f"""s_add_u32 s6, s4, {WS_SEL}
s_addc_u32 s7, s5, 0
s_add_u32 s6, s6, s18
s_addc_u32 s7, s7, 0
s_load_dword s24, s[6:7], 0
s_load_dword s25, s[6:7], 32""")
    for i in range(28):
        a(f"s_mov_b32 s14, {14336*i}\nbuffer_load_dword v{8+i}, v3, s[20:23], s14 offen")
    a(f"""s_movk_i32 s14, 4480
buffer_load_ushort v40, v4, s[28:31], s14 offen
s_add_u32 s14, s17, 256
buffer_load_ushort v41, v4, s[40:43], s14 offen
s_add_u32 s14, s17, {256+7168}
buffer_load_ushort v42, v4, s[40:43], s14 offen""")
    for i in range(0, 28, 4):
        a(f"s_waitcnt vmcnt({27-i} )".replace(" )", ")"))
        if i == 0:
            a("v_add_f32 v8, v8, v9\nv_add_f32 v10, v10, v11")
        else:
            a(f"v_add_f32 v8, v8, v{8+i}\nv_add_f32 v10, v10, v{9+i}\nv_add_f32 v8, v8, v{10+i}\nv_add_f32 v10, v10, v{11+i}")
    a.stamp()
    a("""v_add_f32 v8, v8, v10
v_lshlrev_b32 v5, 2, v0
ds_write_b32 v5, v8
s_waitcnt lgkmcnt(0)
s_barrier
v_cmp_gt_u32 vcc, 64, v0
s_and_saveexec_b64 s[48:49], vcc
s_cbranch_execz K5_end
ds_read_b32 v9, v5 offset:256
ds_read_b32 v10, v5 offset:512
ds_read_b32 v11, v5 offset:768
s_waitcnt lgkmcnt(0)
v_add_f32 v8, v8, v9
v_add_f32 v10, v10, v11
v_add_f32 v8, v8, v10""")
    bf16r(a, 8, 8)
    a("v_mul_f32 v8, s25, v8")
    bf16r(a, 8, 8)
    a("""s_waitcnt vmcnt(0)
v_lshlrev_b32 v40, 16, v40
v_lshlrev_b32 v41, 16, v41
v_lshlrev_b32 v42, 16, v42
v_add_f32 v8, v8, v42""")
    bf16r(a, 8, 8)
    a("v_mul_f32 v8, v8, v40")
    bf16r(a, 8, 8)
    a("""v_add_f32 v8, v8, v41
v_cvt_pk_bf16_f32 v8, v8, v8
s_and_b32 s24, s24, 0x7ff
s_mul_i32 s24, s24, 896
buffer_store_short v8, v4, s[44:47], s24 offen""")
    a.stamp(); a.dump_stamps(4)
    a("K5_end:\ns_endpgm")
    return a.finalize(), 48
```

```python
import sys, struct
sys.path.insert(0, "work")
from asmgen import Asm

NAME = "adaLN_cond__ssm_conv_s4__moe_arch_mod__prompt"
KA = dict(x=0, are=8, aim=16, bre=24, bim=32, cre=40, cim=48, ldt=56, dsk=64, bx=72, wr=80, wg=88, wu=96, wd=104, c=112, wmod=120, out=128, dbg=136, ws=144)
WS_MOD = 0x0000; WS_R = 0x4000; WS_ST2 = 0x6000; WS_ACT = 0xA000; WS_SEL = 0x11000
WS_KC = 0x20000; KC_STRIDE = 2624
WS_XNT = 0x200000; WS_YYT = 0x400000; WS_X1 = 0x600000; WS_PART = 0xA00000
XSZ = 2048*448*2
LOG2E = 0x3fb8aa3b
INV2PI = 0x3e22f983
def f2u(f): return struct.unpack("<I", struct.pack("<f", f))[0]

def srd(a, d, ptr_s, size, off=0):
    if off:
        a(f"s_add_u32 s{d}, s{ptr_s}, {off}\ns_addc_u32 s{d+1}, s{ptr_s+1}, 0")
    else:
        a(f"s_mov_b32 s{d}, s{ptr_s}\ns_mov_b32 s{d+1}, s{ptr_s+1}")
    a(f"s_mov_b32 s{d+2}, {size}\ns_mov_b32 s{d+3}, 0x00020000")

def bf16r(a, dst, src):
    a(f"v_cvt_pk_bf16_f32 v{dst}, v{src}, v{src}\nv_and_b32 v{dst}, 0xffff0000, v{dst}")

def kernel_header(name):
    return f".globl {name}\n.p2align 8\n.type {name},@function\n{name}:\n"

def kernel_desc(name, vgpr, sgpr=96):
    acc = (vgpr + 3) // 4 * 4
    return f""".amdhsa_kernel {name}
  .amdhsa_next_free_vgpr {vgpr}
  .amdhsa_next_free_sgpr {sgpr}
  .amdhsa_accum_offset {acc}
  .amdhsa_group_segment_fixed_size 0
  .amdhsa_kernarg_size 152
  .amdhsa_user_sgpr_count 2
  .amdhsa_user_sgpr_kernarg_segment_ptr 1
  .amdhsa_system_sgpr_workgroup_id_x 1
  .amdhsa_float_denorm_mode_32 3
  .amdhsa_float_denorm_mode_16_64 3
.end_amdhsa_kernel
"""

def sum8lanes(a, v, tmp):
    a(f"""v_add_f32 v{v}, v{v}, v{v} quad_perm:[1,0,3,2] row_mask:0xf bank_mask:0xf
v_add_f32 v{v}, v{v}, v{v} quad_perm:[2,3,0,1] row_mask:0xf bank_mask:0xf
v_add_f32 v{v}, v{v}, v{v} row_half_mirror row_mask:0xf bank_mask:0xf""")

def ln_stats(a, X, n, vm, vrs, t0, t1, t2, t3, s_inv, s_eps):
    T = [t0, t1, t2, t3]
    for i in range(4): a(f"v_add_f32 v{T[i]}, v{X+i}, v{X+i+4}")
    for i in range(8, n): a(f"v_add_f32 v{T[i%4]}, v{T[i%4]}, v{X+i}")
    a(f"v_add_f32 v{t0}, v{t0}, v{t1}\nv_add_f32 v{t2}, v{t2}, v{t3}\nv_add_f32 v{t0}, v{t0}, v{t2}")
    sum8lanes(a, t0, t1)
    a(f"v_mul_f32 v{vrs}, s{s_inv}, v{t0}")
    for i in range(4):
        a(f"v_sub_f32 v{vm}, v{X+i}, v{vrs}\nv_mul_f32 v{T[i]}, v{vm}, v{vm}")
    for i in range(4, n):
        a(f"v_sub_f32 v{vm}, v{X+i}, v{vrs}\nv_fmac_f32 v{T[i%4]}, v{vm}, v{vm}")
    a(f"v_add_f32 v{t0}, v{t0}, v{t1}\nv_add_f32 v{t2}, v{t2}, v{t3}\nv_add_f32 v{t0}, v{t0}, v{t2}")
    sum8lanes(a, t0, t1)
    bf16r(a, vm, vrs)
    a(f"v_mul_f32 v{t0}, s{s_inv}, v{t0}")
    bf16r(a, t0, t0)
    a(f"v_add_f32 v{t0}, s{s_eps}, v{t0}")
    bf16r(a, t0, t0)
    a(f"v_sqrt_f32 v{t0}, v{t0}")
    bf16r(a, t0, t0)
    a(f"v_rcp_f32 v{vrs}, v{t0}")

N_KG, N_LN, N_MOD = 448, 64, 84
def gen_k1():
    a = Asm()
    a.stamp()
    a(f"""s_cmp_ge_u32 s2, {N_KG+N_LN+N_MOD}
s_cbranch_scc1 K1_end
s_load_dwordx2 s[4:5], s[0:1], {KA['ws']}
s_cmp_lt_u32 s2, {N_LN}
s_cbranch_scc1 K1_ln
s_cmp_lt_u32 s2, {N_LN+N_MOD}
s_cbranch_scc1 K1_mod
s_mov_b32 s90, s2
s_sub_u32 s2, s2, {N_LN+N_MOD}""")
    a(f"""s_load_dwordx4 s[8:11], s[0:1], {KA['are']}
s_load_dwordx4 s[12:15], s[0:1], {KA['bre']}
s_load_dwordx4 s[16:19], s[0:1], {KA['cre']}
s_load_dwordx2 s[20:21], s[0:1], {KA['ldt']}
v_and_b32 v1, 63, v0
v_and_b32 v2, 15, v1
v_lshrrev_b32 v3, 4, v1
v_lshrrev_b32 v4, 6, v0
s_lshl_b32 s22, s2, 9
v_lshlrev_b32 v5, 7, v4
v_lshl_add_u32 v5, v3, 5, v5
v_add_u32 v5, s22, v5
s_waitcnt lgkmcnt(0)""")
    for k in range(6):
        srd(a, 24+4*k, 8+2*k, 448*256*2)
    for k in range(6):
        a(f"buffer_load_dwordx4 v[{16+8*k}:{19+8*k}], v5, s[{24+4*k}:{27+4*k}], 0 offen")
        a(f"buffer_load_dwordx4 v[{20+8*k}:{23+8*k}], v5, s[{24+4*k}:{27+4*k}], 0 offen offset:16")
    a(f"""s_lshl_b32 s23, s2, 1
s_and_b32 s23, s23, 0xfffffffc
s_add_u32 s20, s20, s23
s_addc_u32 s21, s21, 0
s_load_dword s23, s[20:21], 0""")
    srd(a, 48, 4, 448*KC_STRIDE, WS_KC)
    a(f"""v_lshlrev_b32 v6, 3, v2
v_lshrrev_b32 v10, 3, v2
v_and_b32 v11, 7, v2
v_lshl_add_u32 v7, v10, 7, v11
v_lshrrev_b32 v12, 2, v11
v_and_b32 v13, 3, v11
v_lshlrev_b32 v13, 1, v13
v_lshl_add_u32 v12, v12, 7, v13
v_add_u32 v12, 256, v12
v_lshrrev_b32 v13, 1, v11
v_and_b32 v14, 1, v11
v_lshlrev_b32 v14, 2, v14
v_lshl_add_u32 v13, v13, 7, v14
v_add_u32 v13, 512, v13
v_cmp_eq_u32 vcc, 0, v10
v_cndmask_b32 v8, v13, v12, vcc
v_lshlrev_b32 v12, 7, v2
v_add_u32 v12, 1024, v12
v_cmp_ge_u32 vcc, 8, v2
v_cndmask_b32 v9, 0, v12, vcc
v_lshlrev_b32 v10, 2, v2
ds_write_b32 v10, v7 offset:12288
ds_write_b32 v10, v8 offset:12352
ds_write_b32 v10, v9 offset:12416
v_cvt_f32_u32 v6, v6
v_cvt_f32_u32 v7, v7
v_cvt_f32_u32 v8, v8
v_cvt_f32_u32 v9, v9
s_waitcnt lgkmcnt(0)
s_and_b32 s57, s2, 1
s_lshl_b32 s57, s57, 4
s_lshr_b32 s23, s23, s57
s_lshl_b32 s23, s23, 16
s_mov_b32 s52, {LOG2E}
s_mov_b32 s53, {INV2PI}
v_mov_b32 v10, s23
v_mul_f32 v10, s52, v10
v_exp_f32 v10, v10""")
    bf16r(a, 10, 10)
    for r in range(64, 76): a(f"v_mov_b32 v{r}, 0")
    a("s_waitcnt vmcnt(0)")
    a.stamp()
    for G in range(16):
        reg = G >> 1
        for k, dst in enumerate((80, 81, 82, 83, 84, 85)):
            src = 16 + 8*k + reg
            if G & 1: a(f"v_and_b32 v{dst}, 0xffff0000, v{src}")
            else: a(f"v_lshlrev_b32 v{dst}, 16, v{src}")
        a(f"""v_mul_f32 v80, v10, v80
v_mul_f32 v81, v10, v81
v_mul_f32 v82, v10, v82
v_mul_f32 v83, v10, v83
v_mul_f32 v80, s52, v80
v_mul_f32 v81, s53, v81
v_mul_f32 v86, v84, v82
v_mul_f32 v87, v84, v83
v_fma_f32 v86, -v85, v83, v86
v_fmac_f32 v87, v85, v82""")
        for k in range(4):
            a(f"v_mul_f32 v{96+k}, v80, v{6+k}\nv_mul_f32 v{100+k}, v81, v{6+k}")
        for k in range(4):
            a(f"v_exp_f32 v{96+k}, v{96+k}\nv_fract_f32 v{100+k}, v{100+k}")
        for k in range(4):
            a(f"v_cos_f32 v{88+2*k}, v{100+k}\nv_sin_f32 v{89+2*k}, v{100+k}")
        for k in range(4):
            a(f"v_mul_f32 v{88+2*k}, v{96+k}, v{88+2*k}\nv_mul_f32 v{89+2*k}, v{96+k}, v{89+2*k}")
        a(f"""v_mul_f32 v104, v86, v88
v_mul_f32 v105, v86, v89
v_fma_f32 v104, -v87, v89, v104
v_fma_f32 v105, -v87, v88, -v105""")
        for T in range(3):
            a(f"v_mfma_f32_16x16x4_f32 v[{64+4*T}:{67+4*T}], v{90+2*T}, v104, v[{64+4*T}:{67+4*T}]")
        for T in range(3):
            a(f"v_mfma_f32_16x16x4_f32 v[{64+4*T}:{67+4*T}], v{91+2*T}, v105, v[{64+4*T}:{67+4*T}]")
    a.stamp()
    a(f"""v_mul_u32_u24 v10, 3072, v4
v_lshl_add_u32 v10, v1, 4, v10
ds_write_b128 v10, v[64:67]
ds_write_b128 v10, v[68:71] offset:1024
ds_write_b128 v10, v[72:75] offset:2048
s_waitcnt lgkmcnt(0)
s_barrier
v_cmp_gt_u32 vcc, 192, v0
s_and_saveexec_b64 s[54:55], vcc
s_cbranch_execz K1_end
v_lshlrev_b32 v10, 4, v0
ds_read_b128 v[16:19], v10
ds_read_b128 v[20:23], v10 offset:3072
ds_read_b128 v[24:27], v10 offset:6144
ds_read_b128 v[28:31], v10 offset:9216
v_lshlrev_b32 v11, 6, v4
v_lshl_add_u32 v11, v3, 4, v11
ds_read_b128 v[32:35], v11 offset:12288
s_mul_i32 s56, s2, {KC_STRIDE}
v_lshlrev_b32 v12, 3, v2
s_waitcnt lgkmcnt(0)""")
    for r in range(4):
        a(f"""v_add_f32 v{16+r}, v{16+r}, v{20+r}
v_add_f32 v{24+r}, v{24+r}, v{28+r}
v_add_f32 v{16+r}, v{16+r}, v{24+r}
v_add_u32 v{36+r}, v{32+r}, v12
v_cvt_f32_u32 v{40+r}, v{36+r}
v_lshrrev_b32 v{40+r}, 16, v{40+r}
v_subrev_u32 v{40+r}, 17024, v{40+r}
v_cmp_gt_u32 vcc, 128, v{36+r}
v_cndmask_b32 v{40+r}, v{40+r}, v{36+r}, vcc
v_lshlrev_b32 v{40+r}, 2, v{40+r}""")
        a(f"""v_cmp_lt_u32 vcc, 2048, v{36+r}
v_cndmask_b32 v{40+r}, v{40+r}, -1, vcc
v_cmp_eq_u32 vcc, 0, v{32+r}
v_cmp_eq_u32 s[58:59], 2, v4
s_and_b64 vcc, vcc, s[58:59]
v_cndmask_b32 v{40+r}, v{40+r}, -1, vcc
buffer_store_dword v{16+r}, v{40+r}, s[48:51], s56 offen""")
    a("s_mov_b32 s2, s90")
    a.stamp(); a.dump_stamps(0); a.nst = 1
    a("s_branch K1_end")
    a(f"""K1_ln:
s_setprio 3
s_load_dwordx2 s[6:7], s[0:1], {KA['x']}
s_lshl_b32 s8, s2, 5
v_lshrrev_b32 v1, 3, v0
v_add_u32 v1, s8, v1
v_and_b32 v2, 7, v0
s_movk_i32 s9, 896
v_mul_lo_u32 v3, v1, s9
v_lshl_add_u32 v3, v2, 4, v3
s_waitcnt lgkmcnt(0)""")
    srd(a, 12, 6, XSZ)
    srd(a, 16, 4, XSZ, WS_XNT)
    for m in range(7):
        a(f"buffer_load_dwordx4 v[{8+4*m}:{11+4*m}], v3, s[12:15], 0 offen offset:{128*m}")
    a(f"""s_mov_b32 s20, {f2u(1.0/448)}
s_mov_b32 s21, {f2u(1e-5)}
v_lshlrev_b32 v4, 15, v2
v_lshl_add_u32 v4, v1, 2, v4""")
    X = 40
    for m in range(7):
        a(f"s_waitcnt vmcnt({6-m})")
        for q in range(4):
            a(f"v_lshlrev_b32 v{X+8*m+2*q}, 16, v{8+4*m+q}\nv_and_b32 v{X+8*m+2*q+1}, 0xffff0000, v{8+4*m+q}")
    a.stamp()
    ln_stats(a, X, 56, 100, 101, 102, 103, 104, 105, 20, 21)
    a.stamp()
    for m in range(7):
        for q in range(4):
            e = X+8*m+2*q
            a(f"""v_sub_f32 v{e}, v{e}, v100
v_sub_f32 v{e+1}, v{e+1}, v100
v_cvt_pk_bf16_f32 v{e}, v{e}, v{e+1}
v_and_b32 v{e+1}, 0xffff0000, v{e}
v_lshlrev_b32 v{e}, 16, v{e}
v_mul_f32 v{e}, v{e}, v101
v_mul_f32 v{e+1}, v{e+1}, v101
v_cvt_pk_bf16_f32 v{e}, v{e}, v{e+1}
s_mov_b32 s22, {m*262144+q*8192}
buffer_store_dword v{e}, v4, s[16:19], s22 offen""")
    a.stamp(); a.dump_stamps(0); a.nst = 1
    a("s_branch K1_end")
    a(f"""K1_mod:
s_setprio 3
s_load_dwordx4 s[8:11], s[0:1], {KA['c']}
s_sub_u32 s6, s2, {N_LN}
s_lshl_b32 s7, s6, 6
v_lshrrev_b32 v1, 2, v0
v_and_b32 v2, 3, v0
s_movk_i32 s12, 5376
v_mul_lo_u32 v3, v1, s12
v_lshl_add_u32 v3, v2, 4, v3
v_add_u32 v3, s7, v3
v_lshlrev_b32 v4, 1, v1
s_waitcnt lgkmcnt(0)""")
    srd(a, 16, 8, 896)
    srd(a, 20, 10, 448*5376)
    srd(a, 24, 4, 5376, WS_MOD)
    for it in range(7):
        a(f"buffer_load_ushort v{8+it}, v4, s[16:19], 0 offen offset:{128*it}")
    for it in range(7):
        a(f"s_mov_b32 s13, {it*344064}\nbuffer_load_dwordx4 v[{16+4*it}:{19+4*it}], v3, s[20:23], s13 offen")
    a(f"s_mov_b32 s14, {LOG2E | 0x80000000}")
    a("s_waitcnt vmcnt(7)")
    for it in range(7):
        a(f"""v_lshlrev_b32 v{8+it}, 16, v{8+it}
v_mul_f32 v50, s14, v{8+it}
v_exp_f32 v50, v50
v_add_f32 v50, 1.0, v50
v_rcp_f32 v50, v50
v_mul_f32 v{8+it}, v{8+it}, v50""")
        bf16r(a, 8+it, 8+it)
    for it in range(7):
        a(f"s_waitcnt vmcnt({6-it})")
        for q in range(4):
            a(f"v_lshlrev_b32 v50, 16, v{16+4*it+q}\nv_and_b32 v51, 0xffff0000, v{16+4*it+q}")
            if it == 0:
                a(f"v_mul_f32 v{52+2*q}, v{8+it}, v50\nv_mul_f32 v{53+2*q}, v{8+it}, v51")
            else:
                a(f"v_fmac_f32 v{52+2*q}, v{8+it}, v50\nv_fmac_f32 v{53+2*q}, v{8+it}, v51")
    a.stamp()
    for q in range(8):
        a(f"v_add_f32 v{52+q}, v{52+q}, v{52+q} row_ror:4 row_mask:0xf bank_mask:0xf")
    for q in range(8):
        a(f"v_add_f32 v{52+q}, v{52+q}, v{52+q} row_ror:8 row_mask:0xf bank_mask:0xf")
    a(f"""v_lshrrev_b32 v5, 4, v0
v_lshlrev_b32 v5, 7, v5
v_lshl_add_u32 v5, v2, 5, v5
ds_write_b128 v5, v[52:55]
ds_write_b128 v5, v[56:59] offset:16
s_waitcnt lgkmcnt(0)
s_barrier
v_cmp_gt_u32 vcc, 32, v0
s_and_saveexec_b64 s[30:31], vcc
s_cbranch_execz K1_end
v_lshlrev_b32 v5, 2, v0""")
    for q in range(16):
        a(f"ds_read_b32 v{60+q}, v5 offset:{128*q}")
    a("s_waitcnt lgkmcnt(0)")
    for st in (8, 4, 2, 1):
        for q in range(st):
            a(f"v_add_f32 v{60+q}, v{60+q}, v{60+q+st}")
    a(f"""v_cvt_pk_bf16_f32 v60, v60, v60
v_lshlrev_b32 v5, 1, v0
buffer_store_short v60, v5, s[24:27], s7 offen""")
    a.stamp(); a.stamp(); a.dump_stamps(0)
    a("""K1_end:
s_endpgm""")
    return a.finalize(), 112

KERNELS = []
def build(which):
    launches = []; text = ""; descs = ""
    for (nm, fn, grid, block, lds) in which:
        body, vg = fn()
        launches.append(f"; @launch kernel={nm} grid=({grid},1,1) block=({block},1,1) lds={lds}")
        text += kernel_header(nm) + body
        descs += ".p2align 6\n" + kernel_desc(nm, vg)
    hdr = open("cdna_kernels/%s.s.ref" % NAME).read().split("; Override launch geometry")[0]
    out = hdr + "\n".join(launches) + "\n" + '.amdgcn_target "amdgcn-amd-amdhsa--gfx950"\n.text\n' + text + '.section .rodata,"a"\n' + descs
    return out

if __name__ == "__main__":
    import asmgen
    if len(sys.argv) > 2: asmgen.STAMPS = True
    import gen_all
    out = build(gen_all.ALL)
    path = sys.argv[1] if len(sys.argv) > 1 else "cdna_kernels/%s.s" % NAME
    open(path, "w").write(out)
    print("wrote", path, len(out))
```

```python
import gen, gen_all
from asmgen import Asm
def gen_e():
    a = Asm(); a("s_endpgm"); return a.finalize(), 8
L = list(gen_all.ALL) + [("e1_kernel", gen_e, 256, 64, 0), ("e2_kernel", gen_e, 256, 64, 0)]
open("variant_extra.s","w").write(gen.build(L))
```

```python
from gen import *
from gen_k3 import *
from gen_k45 import *
from gen_k12 import gen_k12, K12_LDS
ALL = [("k12_kernel", gen_k12, 256, 640, K12_LDS),
       ("k3_kernel", gen_k3, 256, 448, 768),
       ("k4_kernel", gen_k4, 112, 704, 45056+14336),
       ("k5_kernel", gen_k5, 56, 256, 1024)]
```

```python
from gen import *
from gen_k1 import cmul, WS_MODP, REG
from gen_k2 import DSQ, UCS, UCD, KH, KHD
import asmgen

KCL = KH + 2*KHD
PT = KCL + 2*2624
K12_LDS = PT + 256
SPIN_MAX = 200000
WS_GO = 0x1E0000
WS_WPK = 0xC00000

def gen_k12():
    a = Asm()
    a.stamp()
    a(f"""s_cmp_ge_u32 s2, 256
s_cbranch_scc1 KA_end
s_load_dwordx2 s[4:5], s[0:1], {KA['ws']}
s_load_dwordx2 s[62:63], s[0:1], {KA['dbg']}
v_lshrrev_b32 v4, 6, v0
v_and_b32 v1, 63, v0
v_readfirstlane_b32 s3, v4
s_cmp_eq_u32 s3, 8
s_cbranch_scc1 KA_ln
s_cmp_eq_u32 s3, 9
s_cbranch_scc1 KA_mod
s_cmp_ge_u32 s2, 224
s_cbranch_scc1 KA_rep""")
    a(f"""s_load_dwordx4 s[8:11], s[0:1], {KA['are']}
s_load_dwordx4 s[12:15], s[0:1], {KA['bre']}
s_load_dwordx4 s[16:19], s[0:1], {KA['cre']}
s_load_dwordx4 s[20:23], s[0:1], {KA['ldt']}
s_lshl_b32 s56, s2, 10
v_lshlrev_b32 v5, 1, v0
v_add_u32 v5, s56, v5
v_and_b32 v2, 15, v1
v_lshrrev_b32 v3, 4, v1
s_mul_i32 s60, s3, {REG}
s_lshl_b32 s57, s2, 2
s_waitcnt lgkmcnt(0)""")
    for k in range(6):
        srd(a, 24+4*k, 8+2*k, 448*256*2)
    for k in range(6):
        a(f"buffer_load_ushort v{16+k}, v5, s[{24+4*k}:{27+4*k}], 0 offen")
    a(f"""s_add_u32 s20, s20, s57
s_addc_u32 s21, s21, 0
s_load_dword s58, s[20:21], 0
s_add_u32 s22, s22, s57
s_addc_u32 s23, s23, 0
s_load_dword s59, s[22:23], 0
s_mov_b32 m0, s60""")
    a(f"""v_lshrrev_b32 v10, 3, v2
v_and_b32 v11, 7, v2
v_lshl_add_u32 v7, v10, 7, v11
v_lshrrev_b32 v12, 2, v11
v_and_b32 v13, 3, v11
v_lshlrev_b32 v13, 1, v13
v_lshl_add_u32 v12, v12, 7, v13
v_add_u32 v12, 256, v12
v_lshrrev_b32 v13, 1, v11
v_and_b32 v14, 1, v11
v_lshlrev_b32 v14, 2, v14
v_lshl_add_u32 v13, v13, 7, v14
v_add_u32 v13, 512, v13
v_cmp_eq_u32 vcc, 0, v10
v_cndmask_b32 v8, v13, v12, vcc
v_lshlrev_b32 v12, 7, v2
v_add_u32 v12, 1024, v12
v_cmp_ge_u32 vcc, 8, v2
v_cndmask_b32 v9, 0, v12, vcc
v_lshlrev_b32 v10, 2, v2
v_add_u32 v10, {PT}, v10
ds_write_b32 v10, v7
ds_write_b32 v10, v8 offset:64
ds_write_b32 v10, v9 offset:128
v_mul_u32_u24 v6, 544, v2
v_lshl_add_u32 v6, v3, 4, v6
v_add_u32 v6, s60, v6
s_mov_b32 s52, {LOG2E}
s_mov_b32 s53, {INV2PI}
s_lshr_b32 s57, s3, 2
s_lshl_b32 s57, s57, 4
s_waitcnt lgkmcnt(0)
s_lshr_b32 s58, s58, s57
s_lshl_b32 s58, s58, 16
v_mov_b32 v10, s58
v_mul_f32 v10, s52, v10
v_exp_f32 v10, v10""")
    bf16r(a, 10, 10)
    a("s_waitcnt vmcnt(0)")
    a.stamp()
    for k in range(6): a(f"v_lshlrev_b32 v{16+k}, 16, v{16+k}")
    a(f"""v_mul_f32 v16, v10, v16
v_mul_f32 v17, v10, v17
v_mul_f32 v18, v10, v18
v_mul_f32 v19, v10, v19
v_mul_f32 v16, s52, v16
v_mul_f32 v17, s53, v17""")
    Z = {e: 24 + 2*i for i, e in enumerate([1,2,4,8,16,32,64,128,256,512,1024,2048,3,5,6,7,384,640,768,896])}
    dirs = [1, 8, 128, 1024]
    for k, e in enumerate(dirs):
        a(f"v_mul_f32 v{64+k}, {float(e)}, v16\nv_mul_f32 v{68+k}, {float(e)}, v17")
    for k, e in enumerate(dirs):
        a(f"v_exp_f32 v{64+k}, v{64+k}\nv_fract_f32 v{68+k}, v{68+k}")
    for k, e in enumerate(dirs):
        a(f"v_cos_f32 v{Z[e]}, v{68+k}\nv_sin_f32 v{Z[e]+1}, v{68+k}")
    B = [72 + 2*b for b in range(16)]
    cmul(a, B[0], 20, 18)
    a(f"v_xor_b32 v{B[0]+1}, 0x80000000, v{B[0]+1}")
    for k, e in enumerate(dirs):
        a(f"v_mul_f32 v{Z[e]}, v{64+k}, v{Z[e]}\nv_mul_f32 v{Z[e]+1}, v{64+k}, v{Z[e]+1}")
    def sq(e2, e): cmul(a, Z[e2], Z[e], Z[e])
    sq(16, 8); sq(2, 1); sq(256, 128); sq(2048, 1024); sq(32, 16); sq(4, 2); sq(512, 256); sq(64, 32)
    tmpi = [0]
    TH = [104, 105, 106]; TT = [108, 110, 112]; TL = [107, 114, 115]
    def split_write(x, row):
        k = tmpi[0] % 3; tmpi[0] += 1
        h, t, l = TH[k], TT[k], TL[k]
        a(f"""v_cvt_pk_bf16_f32 v{h}, v{x}, v{x+1}
v_lshlrev_b32 v{t}, 16, v{h}
v_and_b32 v{t+1}, 0xffff0000, v{h}
ds_write_addtid_b32 v{h} offset:{row*544}
v_sub_f32 v{t}, v{x}, v{t}
v_sub_f32 v{t+1}, v{x+1}, v{t+1}
v_cvt_pk_bf16_f32 v{l}, v{t}, v{t+1}
ds_write_addtid_b32 v{l} offset:{row*544+256}""")
    cmul(a, B[1], B[0], Z[8], True); cmul(a, B[2], B[0], Z[16], True); cmul(a, B[3], B[1], Z[16], True)
    for b in range(4): cmul(a, B[4+b], B[b], Z[32], True)
    for b in range(8): cmul(a, B[8+b], B[b], Z[64], True)
    for b in range(16): split_write(B[b], b)
    cmul(a, Z[3], Z[1], Z[2]); cmul(a, Z[5], Z[1], Z[4]); cmul(a, Z[6], Z[2], Z[4]); cmul(a, Z[384], Z[256], Z[128])
    cmul(a, Z[7], Z[3], Z[4]); cmul(a, Z[640], Z[512], Z[128]); cmul(a, Z[768], Z[512], Z[256]); cmul(a, Z[896], Z[512], Z[384])
    AV = B
    def gen_tile(T):
        rows = []
        def prod(i, x, y):
            cmul(a, AV[i], Z[x], Z[y]); rows.append((i, AV[i]))
        if T == 0:
            a(f"v_mov_b32 v{AV[0]}, 1.0\nv_mov_b32 v{AV[0]+1}, 0"); rows.append((0, AV[0]))
            for e in range(1, 8): rows.append((e, Z[e]))
            rows.append((8, Z[128]))
            for e in range(1, 8): prod(8+e, 128, e)
        elif T == 1:
            for ai, base in enumerate((256, 384)):
                rows.append((4*ai, Z[base]))
                for e in range(1, 4): prod(4*ai+e, base, 2*e)
            for ai, base in enumerate((512, 640, 768, 896)):
                rows.append((8+2*ai, Z[base])); prod(9+2*ai, base, 4)
        else:
            rows.append((0, Z[1024]))
            for ai in range(1, 8): prod(ai, 1024, 128*ai)
            rows.append((8, Z[2048]))
        return rows
    BF = 116; ACC = 156; AFR = [8, 16, 64, 148]
    rows = gen_tile(0)
    a("s_waitcnt lgkmcnt(0)")
    for s in range(4):
        a(f"ds_read_b128 v[{BF+8*s}:{BF+8*s+3}], v6 offset:{64*s}\nds_read_b128 v[{BF+8*s+4}:{BF+8*s+7}], v6 offset:{64*s+256}")
    a("s_waitcnt lgkmcnt(0)")
    for T in range(3):
        for (r, x) in rows: split_write(x, r)
        if T < 2: rows = gen_tile(T+1)
        a("s_waitcnt lgkmcnt(0)")
        for s in range(4):
            f = AFR[s]
            a(f"ds_read_b128 v[{f}:{f+3}], v6 offset:{64*s}\nds_read_b128 v[{f+4}:{f+7}], v6 offset:{64*s+256}")
        c = ACC + 4*T
        for s in range(4):
            f = AFR[s]; b = BF + 8*s
            a(f"s_waitcnt lgkmcnt({6-2*s})")
            c0 = "0" if s == 0 else f"v[{c}:{c+3}]"
            a(f"""v_mfma_f32_16x16x32_bf16 v[{c}:{c+3}], v[{f}:{f+3}], v[{b}:{b+3}], {c0}
v_mfma_f32_16x16x32_bf16 v[{c}:{c+3}], v[{f+4}:{f+7}], v[{b}:{b+3}], v[{c}:{c+3}]
v_mfma_f32_16x16x32_bf16 v[{c}:{c+3}], v[{f}:{f+3}], v[{b+4}:{b+7}], v[{c}:{c+3}]""")
    a.stamp()
    a(f"""s_lshl_b32 s20, s2, 13
s_lshr_b32 s21, s2, 2
s_lshl_b32 s21, s21, 15
s_add_u32 s8, s4, s21
s_addc_u32 s9, s5, 0
s_add_u32 s8, s8, {WS_XNT}
s_addc_u32 s9, s9, 0
s_mov_b32 s10, 32768
s_mov_b32 s11, 0x00020000
s_and_b32 s21, s2, 3
s_lshl_b32 s21, s21, 2
s_add_u32 s16, s4, s20
s_addc_u32 s17, s5, 0
s_add_u32 s16, s16, {WS_YYT}
s_addc_u32 s17, s17, 0
s_mov_b32 s18, 8192
s_mov_b32 s19, 0x00020000
s_add_u32 s36, s4, {WS_MODP}
s_addc_u32 s37, s5, 0
s_mov_b32 s38, {4*2688*4}
s_mov_b32 s39, 0x00020000
s_add_u32 s40, s4, {WS_MOD}
s_addc_u32 s41, s5, 0
s_mov_b32 s42, 5376
s_mov_b32 s43, 0x00020000
v_bfrev_b32 v4, 1
v_lshl_add_u32 v40, v0, 4, s21
v_lshrrev_b32 v44, 1, v1
v_and_b32 v45, 1, v1
v_mul_u32_u24 v13, 448, v44
v_add_u32 v13, v13, v45
s_lshl_b32 s23, s2, 1
v_add_u32 v13, s23, v13
v_lshlrev_b32 v14, 2, v13
v_cmp_gt_u32 vcc, 12, v1
v_cndmask_b32 v14, v4, v14, vcc
v_lshlrev_b32 v13, 1, v13
v_cmp_gt_u32 vcc, 12, v0
v_cndmask_b32 v13, v4, v13, vcc
v_lshlrev_b32 v10, 4, v1
v_add_u32 v10, s60, v10
ds_write_b128 v10, v[{ACC}:{ACC+3}]
ds_write_b128 v10, v[{ACC+4}:{ACC+7}] offset:1024
ds_write_b128 v10, v[{ACC+8}:{ACC+11}] offset:2048
s_waitcnt lgkmcnt(0)
s_barrier""")
    a.stamp()
    a(f"""s_and_b32 s61, s3, 3
s_cmp_lg_u32 s61, 3
s_cbranch_scc1 KA_red
s_cmp_lg_u32 s3, 3
s_cbranch_scc1 KA_bar2
s_add_u32 s44, s4, {WS_GO}
s_addc_u32 s45, s5, 0
s_mov_b32 s46, 8192
s_mov_b32 s47, 0x00020000
v_mov_b32 v11, {PT+200}
ds_read_b32 v48, v11
s_and_b32 s29, s2, 31
s_lshl_b32 s29, s29, 8
v_cmp_eq_u32 vcc, 0, v1
v_cndmask_b32 v9, v4, 0, vcc
s_mov_b32 s28, 0
s_waitcnt lgkmcnt(0)
v_readfirstlane_b32 s31, v48
KA_poll2:
buffer_load_dword v48, v9, s[44:47], s29 offen sc1
s_add_u32 s28, s28, 1
s_waitcnt vmcnt(0)
v_readfirstlane_b32 s30, v48
s_cmp_ge_u32 s28, {2*SPIN_MAX}
s_cbranch_scc1 KA_bar2
s_cmp_lg_u32 s30, s31
s_cbranch_scc1 KA_bar2
s_sleep 4
s_branch KA_poll2
KA_red:
s_lshr_b32 s57, s3, 2
s_mul_i32 s56, s57, {4*REG}
s_lshl_b32 s58, s61, 10
s_add_u32 s56, s56, s58
v_lshlrev_b32 v10, 4, v1
v_add_u32 v10, s56, v10
ds_read_b128 v[48:51], v10
ds_read_b128 v[52:55], v10 offset:{REG}
ds_read_b128 v[56:59], v10 offset:{2*REG}
ds_read_b128 v[60:63], v10 offset:{3*REG}
s_lshl_b32 s56, s61, 6
s_add_u32 s56, s56, {PT}
v_lshlrev_b32 v11, 4, v3
v_add_u32 v11, s56, v11
ds_read_b128 v[64:67], v11
s_mul_i32 s56, s57, 2624
s_add_u32 s56, s56, {KCL}
v_lshlrev_b32 v12, 3, v2
s_cmp_eq_u32 s61, 2
s_cselect_b64 s[54:55], -1, 0
v_mov_b32 v76, {PT+192}
s_waitcnt lgkmcnt(0)""")
    for r in range(4):
        a(f"""v_add_f32 v{48+r}, v{48+r}, v{52+r}
v_add_f32 v{56+r}, v{56+r}, v{60+r}
v_add_f32 v{48+r}, v{48+r}, v{56+r}
v_add_u32 v{68+r}, v{64+r}, v12
v_cvt_f32_u32 v{72+r}, v{68+r}
v_lshrrev_b32 v{72+r}, 16, v{72+r}
v_subrev_u32 v{72+r}, 17024, v{72+r}
v_cmp_gt_u32 vcc, 128, v{68+r}
v_cndmask_b32 v{72+r}, v{72+r}, v{68+r}, vcc
v_lshl_add_u32 v{72+r}, v{72+r}, 2, s56
v_cmp_lt_u32 vcc, 2048, v{68+r}
v_cndmask_b32 v{72+r}, v{72+r}, v76, vcc
v_cmp_eq_u32 vcc, 0, v{64+r}
s_and_b64 vcc, vcc, s[54:55]
v_cndmask_b32 v{72+r}, v{72+r}, v76, vcc
ds_write_b32 v{72+r}, v{48+r}""")
    a(f"""KA_bar2:
v_and_b32 v5, 255, v0
v_lshrrev_b32 v6, 8, v0
v_mul_u32_u24 v7, 2624, v6
v_add_u32 v7, {KCL}, v7
v_lshlrev_b32 v8, 3, v5""")
    for e in range(0, 8, 2):
        a(f"""v_add_u32 v9, {e}, v8
v_add_u32 v10, {e+1}, v8
v_cvt_f32_u32 v11, v9
v_cvt_f32_u32 v12, v10
v_cvt_pk_bf16_f32 v11, v11, v12
v_lshrrev_b32 v12, 16, v11
v_and_b32 v11, 0xffff, v11
v_subrev_u32 v11, 17024, v11
v_subrev_u32 v12, 17024, v12
v_cmp_gt_u32 vcc, 128, v8
v_cndmask_b32 v11, v11, v9, vcc
v_cndmask_b32 v12, v12, v10, vcc
v_lshl_add_u32 v{80+e}, v11, 2, v7
v_lshl_add_u32 v{81+e}, v12, 2, v7""")
    a("s_waitcnt lgkmcnt(0)\ns_barrier")
    a.stamp()
    a(f"""buffer_load_dword v16, v40, s[8:11], 0 offen sc1
s_movk_i32 s23, 8192
buffer_load_dword v17, v40, s[8:11], s23 offen sc1
s_movk_i32 s23, 16384
buffer_load_dword v18, v40, s[8:11], s23 offen sc1
s_movk_i32 s23, 24576
buffer_load_dword v19, v40, s[8:11], s23 offen sc1
buffer_load_dword v152, v14, s[36:39], 0 offen sc1
s_movk_i32 s23, {2688*4}
buffer_load_dword v153, v14, s[36:39], s23 offen sc1
s_movk_i32 s23, {2*2688*4}
buffer_load_dword v154, v14, s[36:39], s23 offen sc1
s_mov_b32 s23, {3*2688*4}
buffer_load_dword v155, v14, s[36:39], s23 offen sc1""")
    for e in range(8): a(f"ds_read_b32 v{28+e}, v{80+e}")
    a(f"""v_mov_b32 v36, 0
v_mov_b32 v37, 0
v_mov_b32 v38, 0
v_mov_b32 v39, 0
v_lshrrev_b32 v9, 4, v0
v_mul_u32_u24 v9, {UCS}, v9
v_and_b32 v10, 15, v0
v_lshl_add_u32 v9, v10, 4, v9
v_cmp_gt_u32 vcc, 256, v0
s_and_saveexec_b64 s[32:33], vcc
ds_write_b128 v9, v[36:39] offset:4096
s_mov_b64 exec, s[32:33]
v_mul_u32_u24 v9, {KHD}, v6
v_lshl_add_u32 v9, v5, 4, v9
v_add_u32 v9, {KH}, v9
v_cmp_gt_u32 vcc, 15, v5
s_and_saveexec_b64 s[32:33], vcc
ds_write_b128 v9, v[36:39]
ds_write_b128 v9, v[36:39] offset:4352
s_mov_b64 exec, s[32:33]
s_waitcnt lgkmcnt(0)""")
    for k in range(4):
        e = 28 + 2*k
        a(f"""v_cvt_pk_bf16_f32 v{112+k}, v{e}, v{e+1}
v_lshlrev_b32 v120, 16, v{112+k}
v_and_b32 v121, 0xffff0000, v{112+k}
v_sub_f32 v{e}, v{e}, v120
v_sub_f32 v{e+1}, v{e+1}, v121
v_cvt_pk_bf16_f32 v{116+k}, v{e}, v{e+1}""")
    a(f"""ds_write_b128 v9, v[112:115] offset:240
ds_write_b128 v9, v[116:119] offset:{4352+240}
s_waitcnt vmcnt(0)
v_add_f32 v152, v152, v153
v_add_f32 v154, v154, v155
v_add_f32 v152, v152, v154
v_cvt_pk_bf16_f32 v152, v152, v152
buffer_store_short v152, v13, s[40:43], 0 offen
v_and_b32 v152, 0xffff0000, v152
v_readlane_b32 s28, v152, 0
v_readlane_b32 s31, v152, 1
v_readlane_b32 s29, v152, 2
v_readlane_b32 s34, v152, 3
v_mov_b32 v42, s28
v_mov_b32 v43, s31
v_add_f32 v40, 1.0, s29
v_add_f32 v41, 1.0, s34
v_cvt_pk_bf16_f32 v40, v40, v41
v_and_b32 v41, 0xffff0000, v40
v_lshlrev_b32 v40, 16, v40
s_lshl_b32 s31, s59, 16
s_and_b32 s30, s59, 0xffff0000
v_mov_b32 v48, s31
v_mov_b32 v49, s30""")
    a.stamp()
    a("v_lshlrev_b32 v9, 1, v0\nv_sub_u32 v9, 1022, v9")
    for k in range(4):
        src = 16 + k; e = 52 + 2*k
        a(f"""v_lshlrev_b32 v{e}, 16, v{src}
v_and_b32 v{e+1}, 0xffff0000, v{src}
v_mul_f32 v{e}, v{e}, v40
v_mul_f32 v{e+1}, v{e+1}, v41
v_cvt_pk_bf16_f32 v{e}, v{e}, v{e+1}
v_and_b32 v{e+1}, 0xffff0000, v{e}
v_lshlrev_b32 v{e}, 16, v{e}
v_add_f32 v{e}, v{e}, v42
v_add_f32 v{e+1}, v{e+1}, v43
v_cvt_pk_bf16_f32 v{e}, v{e}, v{e+1}
ds_write_b16 v9, v{e} offset:{3072-1024*k}
ds_write_b16_d16_hi v9, v{e} offset:{3072-1024*k+UCD}""")
    a(f"""v_lshlrev_b32 v10, 3, v0
v_sub_u32 v10, 4088, v10
v_and_b32 v9, 1, v0
v_sub_u32 v9, 1, v9
v_mul_u32_u24 v9, {4*UCS}, v9
v_lshrrev_b32 v11, 1, v0
v_sub_u32 v11, 255, v11
v_lshl_add_u32 v9, v11, 4, v9
s_waitcnt lgkmcnt(0)
s_barrier""")
    for d in range(2):
        E = 52 + 8*d
        for k in range(3):
            a(f"ds_read_b64 v[{E+2*k}:{E+2*k+1}], v10 offset:{8*k + d*UCD}")
    W = 80
    for d in range(2):
        E = 52 + 8*d; q = W + 16*d
        a(f"s_waitcnt lgkmcnt({3-3*d})")
        for k in range(4): a(f"v_alignbit_b32 v{q+4+k}, v{E+k+1}, v{E+k}, 16")
        for k in range(4): a(f"v_mov_b32 v{q+8+k}, v{E+k+1}")
        for k in range(4): a(f"v_alignbit_b32 v{q+12+k}, v{E+k+2}, v{E+k+1}, 16")
    for d in range(2):
        E = 52 + 8*d; q = W + 16*d
        a(f"ds_write_b128 v9, v[{E}:{E+3}] offset:{d*UCD}")
        for sg in range(1, 4):
            a(f"ds_write_b128 v9, v[{q+4*sg}:{q+4*sg+3}] offset:{sg*UCS + d*UCD}")
    for k in range(4):
        m = 3 - k; o = 144 + 2*k
        for d in range(2):
            src = 52 + 8*d + (m >> 1)
            if m & 1: a(f"v_and_b32 v{o+d}, 0xffff0000, v{src}")
            else: a(f"v_lshlrev_b32 v{o+d}, 16, v{src}")
        a(f"""v_mul_f32 v{o}, v{o}, v48
v_mul_f32 v{o+1}, v{o+1}, v49
v_cvt_pk_bf16_f32 v{o}, v{o}, v{o+1}
v_and_b32 v{o+1}, 0xffff0000, v{o}
v_lshlrev_b32 v{o}, 16, v{o}""")
    a(f"""v_lshrrev_b32 v2, 6, v0
v_and_b32 v3, 3, v2
v_lshrrev_b32 v4, 4, v1
v_and_b32 v5, 7, v1
v_bfe_u32 v7, v1, 3, 1
v_sub_u32 v8, 7, v5
v_mul_u32_u24 v8, {UCS}, v8
v_mul_u32_u24 v9, {UCD}, v6
v_add_u32 v8, v8, v9
v_lshl_add_u32 v8, v4, 4, v8
v_lshlrev_b32 v9, 8, v7
v_sub_u32 v8, v8, v9
v_lshl_add_u32 v8, v3, 7, v8
v_add_u32 v8, 256, v8
v_and_b32 v10, 15, v1
v_add_u32 v11, v10, v4
v_mul_u32_u24 v9, {KHD}, v6
v_lshl_add_u32 v9, v11, 4, v9
v_lshl_add_u32 v9, v3, 7, v9
v_add_u32 v9, {KH}, v9
s_waitcnt lgkmcnt(0)
s_barrier""")
    a.stamp()
    ACC = 112
    dq = DSQ(a)
    AF = (16, 48); BFc = 80
    def rdA(e, b1):
        r = AF[e] + 4*b1
        dq.issue(f"ds_read_b128 v[{r}:{r+3}], v8 offset:{64*e + 512*(7-b1)}", ("A", e, b1))
    def rdB(e, k1):
        r = BFc + 8*((e*8+k1) % 3)
        dq.issue(f"ds_read_b128 v[{r}:{r+3}], v9 offset:{64*e + 512*k1}", ("Bh", e, k1))
        dq.issue(f"ds_read_b128 v[{r+4}:{r+7}], v9 offset:{64*e + 512*k1 + 4352}", ("Bl", e, k1))
    rdB(0, 0)
    for b1 in range(8): rdA(0, b1)
    rdB(0, 1)
    seq = [(e, k1) for e in range(2) for k1 in range(8)]
    for si, (e, k1) in enumerate(seq):
        r = BFc + 8*(si % 3)
        if si + 2 < len(seq): rdB(*seq[si+2])
        if e == 0: rdA(1, k1)
        dq.wait(("Bl", e, k1))
        for b1 in range(8 - k1):
            dq.wait(("A", e, b1))
            t = k1 + b1; c = ACC + 4*t; ar = AF[e] + 4*b1
            c0 = "0" if (e == 0 and k1 == 0) else f"v[{c}:{c+3}]"
            a(f"v_mfma_f32_16x16x32_bf16 v[{c}:{c+3}], v[{ar}:{ar+3}], v[{r}:{r+3}], {c0}")
            a(f"v_mfma_f32_16x16x32_bf16 v[{c}:{c+3}], v[{ar}:{ar+3}], v[{r+4}:{r+7}], v[{c}:{c+3}]")
    a.stamp()
    a(f"""v_lshlrev_b32 v8, 15, v6
v_lshl_add_u32 v8, v3, 13, v8
v_lshl_add_u32 v8, v10, 5, v8
v_lshrrev_b32 v9, 1, v4
v_lshl_add_u32 v8, v9, 9, v8
v_and_b32 v9, 1, v4
v_lshl_add_u32 v8, v9, 4, v8
s_waitcnt lgkmcnt(0)
s_barrier""")
    for t in range(8):
        a(f"ds_write_b128 v8, v[{ACC+4*t}:{ACC+4*t+3}] offset:{1024*t}")
    a("v_lshlrev_b32 v1, 4, v0\ns_waitcnt lgkmcnt(0)\ns_barrier")
    for d in range(2):
        for q in range(4):
            r = 16 + 16*d + 4*q
            a(f"ds_read_b128 v[{r}:{r+3}], v1 offset:{32768*d + 8192*q}")
    a("s_waitcnt lgkmcnt(0)")
    for d in range(2):
        for k in range(4):
            r = 16 + 16*d + k
            a(f"v_add_f32 v{r}, v{r}, v{r+4}\nv_add_f32 v{r+8}, v{r+8}, v{r+12}\nv_add_f32 v{r}, v{r}, v{r+8}")
    for k in range(4):
        o = 144 + 2*k
        a(f"""v_cvt_pk_bf16_f32 v50, v{16+k}, v{32+k}
v_and_b32 v51, 0xffff0000, v50
v_lshlrev_b32 v50, 16, v50
v_add_f32 v50, v50, v{o}
v_add_f32 v51, v51, v{o+1}
v_cvt_pk_bf16_f32 v{52+k}, v50, v51""")
    a("buffer_store_dwordx4 v[52:55], v1, s[16:19], 0 offen")
    a.stamp(); a.dump_stamps(0); a.nst = 1
    a("s_branch KA_end")
    a(f"""KA_ln:
s_setprio 3
s_load_dwordx2 s[6:7], s[0:1], {KA['x']}
s_lshl_b32 s8, s2, 3
v_lshrrev_b32 v7, 3, v1
v_add_u32 v7, s8, v7
v_and_b32 v2, 7, v1
s_movk_i32 s9, 896
v_mul_lo_u32 v3, v7, s9
v_lshl_add_u32 v3, v2, 4, v3
s_waitcnt lgkmcnt(0)""")
    srd(a, 12, 6, XSZ)
    srd(a, 16, 4, XSZ, WS_XNT)
    srd(a, 24, 62, 256)
    srd(a, 44, 4, 8192, WS_GO)
    a("v_lshlrev_b32 v121, 8, v1\nbuffer_load_dword v120, v121, s[44:47], 0 offen sc1")
    for m in range(7):
        a(f"buffer_load_dwordx4 v[{8+4*m}:{11+4*m}], v3, s[12:15], 0 offen offset:{128*m}")
    a(f"""s_mov_b32 s20, {f2u(1.0/448)}
s_mov_b32 s21, {f2u(1e-5)}
v_lshlrev_b32 v4, 15, v2
v_lshl_add_u32 v4, v7, 4, v4""")
    X = 40
    for m in range(7):
        a(f"s_waitcnt vmcnt({6-m})")
        for q in range(4):
            a(f"v_lshlrev_b32 v{X+8*m+2*q}, 16, v{8+4*m+q}\nv_and_b32 v{X+8*m+2*q+1}, 0xffff0000, v{8+4*m+q}")
    a.stamp()
    ln_stats(a, X, 56, 110, 112, 100, 101, 102, 103, 20, 21)
    a.stamp()
    for m in range(7):
        for q in range(4):
            e = X+8*m+2*q
            a(f"""v_sub_f32 v{e}, v{e}, v110
v_sub_f32 v{e+1}, v{e+1}, v110
v_cvt_pk_bf16_f32 v{e}, v{e}, v{e+1}
v_and_b32 v{e+1}, 0xffff0000, v{e}
v_lshlrev_b32 v{e}, 16, v{e}
v_mul_f32 v{e}, v{e}, v112
v_mul_f32 v{e+1}, v{e+1}, v112
v_cvt_pk_bf16_f32 v{8+4*m+q}, v{e}, v{e+1}""")
        a(f"s_mov_b32 s22, {m*262144}\nbuffer_store_dwordx4 v[{8+4*m}:{11+4*m}], v4, s[16:19], s22 offen sc1")
    a(f"""s_waitcnt vmcnt(0)
s_cmp_lt_u32 s2, 224
s_cbranch_scc1 KA_sig
s_barrier
KA_sig:
s_and_b32 s29, s2, 3
s_lshl_b32 s29, s29, 6
v_mov_b32 v8, 1
v_cmp_eq_u32 vcc, 0, v1
v_bfrev_b32 v10, 1
v_cndmask_b32 v9, v10, 0, vcc
buffer_atomic_add v8, v9, s[24:27], s29 offen sc0
s_waitcnt vmcnt(0)
v_readfirstlane_b32 s30, v8
s_cmp_lg_u32 s30, 105
s_cbranch_scc1 KA_notlast
v_mov_b32 v8, 1
buffer_atomic_add v8, v9, s[24:27], 0 offen offset:32 sc0
s_waitcnt vmcnt(0)
v_readfirstlane_b32 s30, v8
s_cmp_lg_u32 s30, 3
s_cbranch_scc1 KA_notlast
v_not_b32 v12, v120
buffer_store_dword v12, v121, s[44:47], 0 offen sc1
KA_notlast:""")
    a.stamp()
    a(f"""s_and_b32 s29, s2, 31
v_readlane_b32 s31, v120, s29
v_mov_b32 v11, {PT+200}
v_mov_b32 v12, s31
ds_write_b32 v11, v12
s_waitcnt lgkmcnt(0)""")
    if asmgen.STAMPS:
        a("v_mov_b32 v0, v1\ns_add_u32 s2, s2, 256")
        a.dump_stamps(0)
    a("s_branch KA_end")
    a.nst = 1
    a(f"""KA_rep:
s_cmp_ge_u32 s2, 252
s_cbranch_scc1 KA_end
s_load_dwordx4 s[8:11], s[0:1], {KA['wg']}
s_sub_u32 s12, s2, 224
s_lshl_b32 s12, s12, 3
s_add_u32 s12, s12, s3
s_cmp_ge_u32 s12, 112
s_cselect_b32 s13, 1, 0
s_mul_i32 s14, s13, 112
s_sub_u32 s12, s12, s14
v_lshrrev_b32 v2, 4, v1
v_and_b32 v3, 15, v1
s_lshl_b32 s14, s12, 2
v_add_u32 v2, s14, v2
s_movk_i32 s15, 3584
v_mul_lo_u32 v5, v2, s15
v_lshl_add_u32 v5, v3, 4, v5
v_lshrrev_b32 v6, 1, v3
s_movk_i32 s15, 28672
v_mul_lo_u32 v6, v6, s15
v_lshl_add_u32 v6, v2, 5, v6
v_and_b32 v7, 1, v3
v_lshl_add_u32 v6, v7, 4, v6
s_mul_i32 s15, s13, 14336
v_add_u32 v6, s15, v6
s_waitcnt lgkmcnt(0)
s_cmp_eq_u32 s13, 1
s_cselect_b32 s16, s10, s8
s_cselect_b32 s17, s11, s9
s_mov_b32 s18, {448*3584}
s_mov_b32 s19, 0x00020000""")
    srd(a, 20, 4, 112*28672, WS_WPK)
    a("s_barrier")
    for c in range(14):
        a(f"buffer_load_dwordx4 v[{8+4*c}:{11+4*c}], v5, s[16:19], 0 offen offset:{256*c}")
    for c in range(14):
        a(f"s_mov_b32 s15, {8*28672*c}\ns_waitcnt vmcnt({13})\nbuffer_store_dwordx4 v[{8+4*c}:{11+4*c}], v6, s[20:23], s15 offen sc1")
    a("s_branch KA_end")
    a(f"""KA_mod:
s_cmp_ge_u32 s2, 168
s_cbranch_scc1 KA_end
s_setprio 3
s_load_dwordx4 s[8:11], s[0:1], {KA['c']}
s_mov_b32 s28, s2
s_lshr_b32 s6, s28, 2
s_and_b32 s7, s28, 3
s_mul_i32 s12, s7, {112*5376}
s_lshl_b32 s13, s6, 7
s_add_u32 s12, s12, s13
v_lshrrev_b32 v5, 3, v1
v_and_b32 v2, 7, v1
s_movk_i32 s14, 5376
v_mul_lo_u32 v3, v5, s14
v_lshl_add_u32 v3, v2, 4, v3
v_add_u32 v3, s12, v3
s_mul_i32 s15, s7, 224
v_lshl_add_u32 v4, v5, 1, s15
s_waitcnt lgkmcnt(0)""")
    srd(a, 16, 8, 896)
    srd(a, 20, 10, 448*5376)
    srd(a, 24, 4, 4*2688*4, WS_MODP)
    srd(a, 32, 62, 256)
    srd(a, 44, 4, 8192, WS_GO)
    a("v_lshlrev_b32 v121, 8, v1\nbuffer_load_dword v120, v121, s[44:47], 0 offen sc1")
    for it in range(14):
        a(f"buffer_load_ushort v{8+it}, v4, s[16:19], 0 offen offset:{16*it}")
    for it in range(14):
        a(f"s_mov_b32 s13, {it*8*5376}\nbuffer_load_dwordx4 v[{24+4*it}:{27+4*it}], v3, s[20:23], s13 offen")
    a(f"s_mov_b32 s14, {LOG2E | 0x80000000}")
    a("s_waitcnt vmcnt(14)")
    for it in range(14):
        a(f"v_lshlrev_b32 v{8+it}, 16, v{8+it}\nv_mul_f32 v{80+it}, s14, v{8+it}")
    for it in range(14): a(f"v_exp_f32 v{80+it}, v{80+it}")
    for it in range(14): a(f"v_add_f32 v{80+it}, 1.0, v{80+it}")
    for it in range(14): a(f"v_rcp_f32 v{80+it}, v{80+it}")
    for it in range(14): a(f"v_mul_f32 v{8+it}, v{8+it}, v{80+it}")
    for it in range(0, 14, 2):
        a(f"v_cvt_pk_bf16_f32 v{8+it}, v{8+it}, v{9+it}\nv_and_b32 v{9+it}, 0xffff0000, v{8+it}\nv_lshlrev_b32 v{8+it}, 16, v{8+it}")
    for it in range(14):
        a(f"s_waitcnt vmcnt({13-it})")
        for q in range(4):
            a(f"v_lshlrev_b32 v96, 16, v{24+4*it+q}\nv_and_b32 v97, 0xffff0000, v{24+4*it+q}")
            if it == 0: a(f"v_mul_f32 v{100+2*q}, v96, v{8+it}\nv_mul_f32 v{101+2*q}, v97, v{8+it}")
            else: a(f"v_fmac_f32 v{100+2*q}, v96, v{8+it}\nv_fmac_f32 v{101+2*q}, v97, v{8+it}")
    a.stamp()
    for q in range(8):
        a(f"v_add_f32 v{100+q}, v{100+q}, v{100+q} row_ror:8 row_mask:0xf bank_mask:0xf")
    for q in range(8): a(f"v_mov_b32 v{110+q}, v{100+q}")
    for q in range(8): a(f"v_permlane32_swap_b32 v{100+q}, v{110+q}")
    for q in range(8): a(f"v_add_f32 v{100+q}, v{100+q}, v{110+q}")
    for q in range(8): a(f"v_mov_b32 v{110+q}, v{100+q}")
    for q in range(8): a(f"v_permlane16_swap_b32 v{100+q}, v{110+q}")
    for q in range(8): a(f"v_add_f32 v{100+q}, v{100+q}, v{110+q}")
    a(f"""s_mul_i32 s12, s7, {2688*4}
s_lshl_b32 s13, s6, 8
s_add_u32 s12, s12, s13
v_lshlrev_b32 v3, 5, v1
v_bfrev_b32 v4, 1
v_cmp_gt_u32 vcc, 8, v1
v_cndmask_b32 v3, v4, v3, vcc
buffer_store_dwordx4 v[100:103], v3, s[24:27], s12 offen sc1
buffer_store_dwordx4 v[104:107], v3, s[24:27], s12 offen offset:16 sc1
s_waitcnt vmcnt(0)""")
    a.stamp()
    if asmgen.STAMPS:
        a("v_mov_b32 v0, v1\ns_add_u32 s2, s28, 512")
        a.dump_stamps(0)
        a("s_mov_b64 exec, -1\ns_mov_b32 s2, s28")
    a(f"""s_and_b32 s29, s2, 3
s_lshl_b32 s29, s29, 6
v_mov_b32 v8, 1
v_cmp_eq_u32 vcc, 0, v1
v_bfrev_b32 v10, 1
v_cndmask_b32 v9, v10, 0, vcc
buffer_atomic_add v8, v9, s[32:35], s29 offen sc0
s_waitcnt vmcnt(0)
v_readfirstlane_b32 s30, v8
s_cmp_lg_u32 s30, 105
s_cbranch_scc1 KA_end
v_mov_b32 v8, 1
buffer_atomic_add v8, v9, s[32:35], 0 offen offset:32 sc0
s_waitcnt vmcnt(0)
v_readfirstlane_b32 s30, v8
s_cmp_lg_u32 s30, 3
s_cbranch_scc1 KA_end
v_not_b32 v12, v120
buffer_store_dword v12, v121, s[44:47], 0 offen sc1
KA_end:
s_endpgm""")
    return a.finalize(), 168
```

```python
from gen import *

def unpack(a, lo, hi, src):
    a(f"v_lshlrev_b32 v{lo}, 16, v{src}\nv_and_b32 v{hi}, 0xffff0000, v{src}")
def rnd_pair(a, e):
    a(f"v_cvt_pk_bf16_f32 v{e}, v{e}, v{e+1}\nv_and_b32 v{e+1}, 0xffff0000, v{e}\nv_lshlrev_b32 v{e}, 16, v{e}")

def gen_k3():
    a = Asm()
    a.stamp()
    a(f"""s_cmp_ge_u32 s2, 256
s_cbranch_scc1 K3_end
s_load_dwordx2 s[4:5], s[0:1], {KA['ws']}
s_load_dwordx2 s[6:7], s[0:1], {KA['x']}
s_load_dwordx2 s[8:9], s[0:1], {KA['wr']}
s_load_dwordx2 s[10:11], s[0:1], {KA['out']}
v_and_b32 v1, 7, v0
v_bfe_u32 v2, v0, 3, 3
v_lshrrev_b32 v3, 6, v0
v_lshl_add_u32 v4, v3, 3, v1
s_lshl_b32 s12, s2, 3
v_add_u32 v5, s12, v2
s_movk_i32 s13, 896
v_mul_lo_u32 v6, v5, s13
v_lshl_add_u32 v6, v4, 4, v6
v_lshlrev_b32 v7, 15, v4
v_lshl_add_u32 v7, v5, 2, v7
v_lshlrev_b32 v8, 4, v4
s_waitcnt lgkmcnt(0)""")
    srd(a, 16, 6, XSZ)
    srd(a, 20, 4, XSZ, WS_YYT)
    srd(a, 24, 4, 5376, WS_MOD)
    srd(a, 28, 8, 896)
    srd(a, 32, 10, XSZ)
    srd(a, 36, 4, XSZ, WS_X1)
    srd(a, 40, 4, 0x6000, WS_R)
    a("buffer_load_dwordx4 v[12:15], v6, s[16:19], 0 offen")
    for q in range(4):
        a(f"s_mov_b32 s14, {8192*q}\nbuffer_load_dword v{16+q}, v7, s[20:23], s14 offen")
    a(f"""buffer_load_dwordx4 v[20:23], v8, s[24:27], 0 offen offset:1792
buffer_load_dwordx4 v[24:27], v8, s[24:27], 0 offen offset:3584
buffer_load_dwordx4 v[28:31], v8, s[24:27], 0 offen offset:2688
s_movk_i32 s14, 4480
buffer_load_dwordx4 v[32:35], v8, s[24:27], s14 offen
buffer_load_dwordx4 v[36:39], v8, s[28:31], 0 offen
s_mov_b32 s44, {f2u(1.0/64)}
s_mov_b32 s45, {f2u(1.0/7)}
s_mov_b32 s46, {f2u(64.0)}
s_mov_b32 s47, {f2u(1.0/448)}
s_mov_b32 s48, {f2u(1e-5)}
v_lshlrev_b32 v9, 6, v2
v_lshl_add_u32 v10, v3, 3, v9
s_waitcnt vmcnt(4)""")
    a.stamp()
    X = 40
    for q in range(4):
        e = X + 2*q
        unpack(a, e, e+1, 16+q)
        unpack(a, 60, 61, 20+q)
        a(f"v_pk_mul_f32 v[{e}:{e+1}], v[{e}:{e+1}], v[60:61]")
        rnd_pair(a, e)
        unpack(a, 60, 61, 12+q)
        a(f"v_pk_add_f32 v[{e}:{e+1}], v[{e}:{e+1}], v[60:61]")
        a(f"v_cvt_pk_bf16_f32 v{48+q}, v{e}, v{e+1}")
        unpack(a, e, e+1, 48+q)
    a("buffer_store_dwordx4 v[48:51], v6, s[36:39], 0 offen")
    a(f"""v_add_f32 v52, v40, v41
v_add_f32 v53, v42, v43
v_add_f32 v54, v44, v45
v_add_f32 v55, v46, v47
v_add_f32 v52, v52, v53
v_add_f32 v54, v54, v55
v_add_f32 v52, v52, v54""")
    sum8lanes(a, 52, 53)
    a("v_mul_f32 v52, s44, v52")
    a("v_sub_f32 v54, v40, v52\nv_mul_f32 v53, v54, v54")
    for i in range(1, 8):
        a(f"v_sub_f32 v54, v{40+i}, v52\nv_fmac_f32 v53, v54, v54")
    sum8lanes(a, 53, 54)
    a(f"""ds_write_b64 v10, v[52:53]
s_waitcnt lgkmcnt(0)
s_barrier
ds_read_b128 v[64:67], v9
ds_read_b128 v[68:71], v9 offset:16
ds_read_b128 v[72:75], v9 offset:32
ds_read_b64 v[76:77], v9 offset:48""")
    a.stamp()
    a("s_waitcnt vmcnt(1)")
    for q in range(4):
        e = 80 + 2*q
        unpack(a, e, e+1, 24+q)
        a(f"v_pk_add_f32 v[{e}:{e+1}], v[{e}:{e+1}], 1.0 op_sel_hi:[1,0]")
        rnd_pair(a, e)
        unpack(a, 88+2*q, 89+2*q, 28+q)
    a(f"""s_waitcnt lgkmcnt(0)
v_add_f32 v52, v64, v66
v_add_f32 v53, v68, v70
v_add_f32 v54, v72, v74
v_add_f32 v52, v52, v76
v_add_f32 v52, v52, v53
v_add_f32 v52, v52, v54
v_mul_f32 v52, s45, v52
v_add_f32 v53, v65, v67
v_add_f32 v54, v69, v71
v_add_f32 v55, v73, v75
v_add_f32 v53, v53, v77
v_add_f32 v53, v53, v54
v_add_f32 v53, v53, v55
v_sub_f32 v55, v64, v52
v_mul_f32 v54, v55, v55""")
    for i in range(1, 7):
        a(f"v_sub_f32 v55, v{64+2*i}, v52\nv_fmac_f32 v54, v55, v55")
    a("v_fmac_f32 v53, s46, v54\nv_mul_f32 v53, s47, v53")
    bf16r(a, 56, 52)
    bf16r(a, 53, 53)
    a("v_add_f32 v53, s48, v53")
    bf16r(a, 53, 53)
    a("v_sqrt_f32 v53, v53")
    bf16r(a, 53, 53)
    a("v_rcp_f32 v57, v53\nv_mov_b32 v58, v56\nv_mov_b32 v59, v57")
    a("v_mov_b32 v100, v56\nv_mov_b32 v101, v56\nv_mov_b32 v102, v57\nv_mov_b32 v103, v57")
    for q in range(4):
        e = 104 + 2*q; x = X + 2*q
        a(f"v_pk_add_f32 v[{e}:{e+1}], v[{x}:{x+1}], v[100:101] neg_lo:[0,1] neg_hi:[0,1]")
        rnd_pair(a, e)
        a(f"v_pk_mul_f32 v[{e}:{e+1}], v[{e}:{e+1}], v[102:103]")
        rnd_pair(a, e)
        a(f"v_pk_mul_f32 v[{e}:{e+1}], v[{e}:{e+1}], v[{80+2*q}:{81+2*q}]")
        rnd_pair(a, e)
        a(f"v_pk_add_f32 v[{e}:{e+1}], v[{e}:{e+1}], v[{88+2*q}:{89+2*q}]")
        rnd_pair(a, e)
        unpack(a, 60, 61, 36+q)
        if q == 0: a(f"v_mul_f32 v62, v{e}, v60\nv_mul_f32 v63, v{e+1}, v61")
        else: a(f"v_fmac_f32 v62, v{e}, v60\nv_fmac_f32 v63, v{e+1}, v61")
        unpack(a, 60, 61, 32+q)
        a(f"v_pk_mul_f32 v[60:61], v[60:61], v[{e}:{e+1}]")
        rnd_pair(a, 60)
        a(f"v_pk_add_f32 v[60:61], v[60:61], v[{x}:{x+1}]")
        a(f"v_cvt_pk_bf16_f32 v{112+q}, v60, v61")
    a("buffer_store_dwordx4 v[112:115], v6, s[32:35], 0 offen")
    a.stamp()
    a("v_add_f32 v62, v62, v63")
    sum8lanes(a, 62, 63)
    a(f"""v_lshlrev_b32 v9, 5, v2
v_lshl_add_u32 v10, v3, 2, v9
ds_write_b32 v10, v62 offset:512
s_waitcnt lgkmcnt(0)
s_barrier
v_cmp_gt_u32 vcc, 64, v0
s_and_saveexec_b64 s[50:51], vcc
s_cbranch_execz K3_end
ds_read_b128 v[64:67], v9 offset:512
ds_read_b96 v[68:70], v9 offset:528
v_cmp_eq_u32 vcc, 0, v1
v_lshlrev_b32 v11, 2, v5
v_lshlrev_b32 v12, 3, v5
v_bfrev_b32 v13, 1
v_cndmask_b32 v11, v13, v11, vcc
v_cndmask_b32 v12, v13, v12, vcc
s_movk_i32 s14, 0x2000
s_waitcnt lgkmcnt(0)
v_add_f32 v64, v64, v65
v_add_f32 v66, v66, v67
v_add_f32 v68, v68, v69
v_add_f32 v64, v64, v66
v_add_f32 v68, v68, v70
v_add_f32 v64, v64, v68""")
    bf16r(a, 64, 64)
    a(f"""v_ashrrev_i32 v65, 31, v64
v_or_b32 v65, 0x80000000, v65
v_xor_b32 v64, v64, v65
v_and_b32 v64, 0xffff0000, v64
v_sub_u32 v65, 2047, v5
v_or_b32 v64, v64, v65
buffer_store_dword v64, v11, s[40:43], 0 offen
buffer_store_dwordx2 v[58:59], v12, s[40:43], s14 offen""")
    a.stamp(); a.dump_stamps(2)
    a("""K3_end:
s_endpgm""")
    return a.finalize(), 116
```

```python
from gen import *
WS_WPK = 0xC00000
from gen_k3 import unpack, rnd_pair

class Pool:
    def __init__(self, regs): self.free = list(regs)
    def get(self): return self.free.pop(0)
    def put(self, r): self.free.append(r)

def CE(a, L, i, j, pool):
    hi = pool.get()
    a(f"v_max_u32 v{hi}, v{L[i]}, v{L[j]}\nv_min_u32 v{L[j]}, v{L[i]}, v{L[j]}")
    pool.put(L[i]); L[i] = hi

SORT8 = [(0,1),(2,3),(4,5),(6,7),(0,2),(1,3),(4,6),(5,7),(1,2),(5,6),(0,4),(3,7),(1,5),(2,6),(1,4),(3,6),(2,4),(3,5),(3,4)]
def bitonic_fix(a, L, pool):
    for (i, j) in [(0,4),(1,5),(2,6),(3,7),(0,2),(1,3),(4,6),(5,7),(0,1),(2,3),(4,5),(6,7)]:
        CE(a, L, i, j, pool)
def merge_dpp(a, L, pool, dpp, fix=True):
    N = [pool.get() for _ in range(8)]
    for i in range(8):
        a(f"v_max_u32 v{N[i]}, v{L[7-i]}, v{L[i]} {dpp}")
    for r in L: pool.put(r)
    L[:] = N
    if fix: bitonic_fix(a, L, pool)

def silu_inplace(a, v, t, s_nl2e):
    a(f"""v_mul_f32 v{t}, s{s_nl2e}, v{v}
v_exp_f32 v{t}, v{t}
v_add_f32 v{t}, 1.0, v{t}
v_rcp_f32 v{t}, v{t}
v_mul_f32 v{v}, v{v}, v{t}""")

def gen_k4():
    a = Asm()
    a.stamp()
    a(f"""s_cmp_ge_u32 s2, 112
s_cbranch_scc1 K4_end
s_load_dwordx2 s[4:5], s[0:1], {KA['ws']}""")
    a(f"""v_lshrrev_b32 v4, 6, v0
v_readfirstlane_b32 s3, v4
s_cmp_ge_u32 s3, 4
s_cbranch_scc1 K4_main
v_mov_b32 v6, v0
v_and_b32 v1, 63, v0
v_lshlrev_b32 v5, 5, v6
s_waitcnt lgkmcnt(0)
s_add_u32 s16, s4, {WS_R}
s_addc_u32 s17, s5, 0
s_mov_b32 s18, 0x6000
s_mov_b32 s19, 0x00020000
buffer_load_dwordx4 v[8:11], v5, s[16:19], 0 offen
buffer_load_dwordx4 v[12:15], v5, s[16:19], 0 offen offset:16
""")
    a.nst = 1
    a.stamp()
    a("s_waitcnt vmcnt(0)")
    a.stamp()
    L = list(range(8, 16)); pool = Pool(range(18, 40))
    for (i, j) in SORT8: CE(a, L, i, j, pool)
    for dpp in ("quad_perm:[1,0,3,2] row_mask:0xf bank_mask:0xf", "quad_perm:[2,3,0,1] row_mask:0xf bank_mask:0xf",
                "row_half_mirror row_mask:0xf bank_mask:0xf", "row_mirror row_mask:0xf bank_mask:0xf",
                "row_bcast:15 row_mask:0xa bank_mask:0xf", "row_bcast:31 row_mask:0xc bank_mask:0xf"):
        merge_dpp(a, L, pool, dpp)
    a(f"""v_lshlrev_b32 v17, 5, v4
v_cmp_eq_u32 vcc, 63, v1
s_and_saveexec_b64 s[44:45], vcc""")
    for i in range(8):
        a(f"ds_write_b32 v17, v{L[i]} offset:{4*i}")
    a("""s_mov_b64 exec, s[44:45]
s_waitcnt lgkmcnt(0)""")
    a.stamp()
    import asmgen
    if asmgen.STAMPS:
        a("v_mov_b32 v0, v6\ns_add_u32 s2, s2, 256")
        a.dump_stamps(3)
        a("s_mov_b64 exec, -1")
    a("s_barrier")
    a("s_endpgm\nK4_main:")
    a.nst = 1
    a(f"""s_load_dwordx2 s[6:7], s[0:1], {KA['wd']}
v_and_b32 v1, 63, v0
v_and_b32 v2, 15, v1
v_lshrrev_b32 v3, 4, v1
v_subrev_u32 v0, 256, v0
v_subrev_u32 v4, 4, v4
s_lshl_b32 s12, s2, 5
v_lshlrev_b32 v6, 11, v4
v_lshl_add_u32 v6, v1, 4, v6
s_mul_i32 s13, s2, 28672
v_add_u32 v6, s13, v6
s_waitcnt lgkmcnt(0)""")
    srd(a, 16, 4, 0x6000, WS_R)
    srd(a, 20, 4, 112*28672, WS_WPK)
    srd(a, 28, 4, 5376, WS_MOD)
    srd(a, 32, 4, XSZ, WS_X1)
    srd(a, 36, 4, 8*1792*2, WS_ACT)
    srd(a, 40, 4, 256+2*7168, WS_SEL)
    srd(a, 52, 6, 1792*896)
    srd(a, 56, 4, 112*14336, WS_PART)
    a.stamp()
    a(f"""s_movk_i32 s14, 14336
buffer_load_dwordx4 v[128:131], v6, s[20:23], 0 offen
buffer_load_dwordx4 v[132:135], v6, s[20:23], 0 offen offset:1024
buffer_load_dwordx4 v[136:139], v6, s[20:23], s14 offen
buffer_load_dwordx4 v[140:143], v6, s[20:23], s14 offen offset:1024""")
    a(f"""v_lshlrev_b32 v7, 7, v4
v_lshl_add_u32 v7, v3, 4, v7
buffer_load_dwordx4 v[80:83], v7, s[28:31], 0 offen offset:3584
buffer_load_dwordx4 v[84:87], v7, s[28:31], 0 offen offset:3648
buffer_load_dwordx4 v[88:91], v7, s[28:31], 0 offen offset:2688
buffer_load_dwordx4 v[92:95], v7, s[28:31], 0 offen offset:2752
v_lshlrev_b32 v112, 4, v0
s_mul_i32 s60, s2, {16*896}
s_add_u32 s14, s60, 7168
buffer_load_dwordx4 v[144:147], v112, s[52:55], s60 offen
buffer_load_dwordx4 v[148:151], v112, s[52:55], s14 offen
v_lshlrev_b32 v113, 12, v4
v_lshl_add_u32 v113, v1, 4, v113
v_add_u32 v113, 16384, v113
v_lshlrev_b32 v114, 12, v4
v_lshl_add_u32 v114, v3, 8, v114
v_lshrrev_b32 v115, 2, v2
v_lshl_add_u32 v114, v115, 5, v114
v_and_b32 v115, 3, v2
v_lshl_add_u32 v114, v115, 3, v114
v_add_u32 v114, 16384, v114
""")
    a.stamp()
    a("""K4_bar1:
s_barrier""")
    a.stamp()
    a("""
v_and_b32 v17, 3, v1
v_lshlrev_b32 v17, 5, v17
ds_read_b128 v[8:11], v17
ds_read_b128 v[12:15], v17 offset:16
s_waitcnt lgkmcnt(0)""")
    L = list(range(8, 16)); pool = Pool(range(18, 40))
    merge_dpp(a, L, pool, "quad_perm:[1,0,3,2] row_mask:0xf bank_mask:0xf")
    merge_dpp(a, L, pool, "quad_perm:[2,3,0,1] row_mask:0xf bank_mask:0xf")
    a.stamp()
    a("""v_and_b32 v16, 1, v1
v_cmp_eq_u32 s[46:47], 1, v16
v_and_b32 v16, 2, v1
v_cmp_eq_u32 s[48:49], 2, v16
v_and_b32 v16, 4, v1
v_cmp_eq_u32 s[50:51], 4, v16""")
    for i in range(4): a(f"v_cndmask_b32 v{40+i}, v{L[2*i]}, v{L[2*i+1]}, s[46:47]")
    a("""v_cndmask_b32 v40, v40, v41, s[48:49]
v_cndmask_b32 v42, v42, v43, s[48:49]
v_cndmask_b32 v40, v40, v42, s[50:51]
v_and_b32 v41, 0x7ff, v40
v_sub_u32 v41, 2047, v41
s_movk_i32 s13, 896
v_mul_lo_u32 v42, v41, s13
v_add_u32 v42, v42, v7
v_lshlrev_b32 v43, 3, v41
s_movk_i32 s14, 0x2000
buffer_load_dwordx4 v[44:47], v42, s[32:35], 0 offen
buffer_load_dwordx4 v[48:51], v42, s[32:35], 0 offen offset:64
buffer_load_dwordx2 v[52:53], v43, s[16:19], s14 offen""")
    a(f"""s_mov_b32 s15, {LOG2E | 0x80000000}
v_and_b32 v54, 0xffff0000, v40
v_ashrrev_i32 v55, 31, v54
v_not_b32 v55, v55
v_or_b32 v55, 0x80000000, v55
v_xor_b32 v54, v54, v55
v_and_b32 v54, 0xffff0000, v54
v_mul_f32 v55, s15, v54
v_exp_f32 v55, v55
v_add_f32 v55, 1.0, v55
v_rcp_f32 v55, v55""")
    bf16r(a, 55, 55)
    a(f"""v_lshlrev_b32 v56, 2, v0
v_bfrev_b32 v57, 1
v_cmp_gt_u32 vcc, 8, v0
v_cndmask_b32 v56, v57, v56, vcc
s_cmp_lg_u32 s2, 0
s_cbranch_scc1 K4_nosel
buffer_store_dword v41, v56, s[40:43], 0 offen
buffer_store_dword v55, v56, s[40:43], 0 offen offset:32
K4_nosel:""")
    a(f"""s_waitcnt vmcnt(9)
ds_write_b128 v113, v[128:131]
ds_write_b128 v113, v[132:135] offset:1024
ds_write_b128 v113, v[136:139] offset:2048
ds_write_b128 v113, v[140:143] offset:3072
s_waitcnt vmcnt(3)
ds_write_b128 v112, v[144:147] offset:45056
ds_write_b128 v112, v[148:151] offset:{45056+7168}
s_waitcnt lgkmcnt(0)""")
    for mat in range(2):
        for s in range(2):
            for h in range(2):
                r = 64 + 8*mat + 4*s + 2*h
                a(f"ds_read_b64_tr_b16 v[{r}:{r+1}], v114 offset:{2048*mat + 1024*s + 128*h}")
    a("s_waitcnt lgkmcnt(0)")
    a.stamp()
    for q in range(8):
        unpack(a, 62, 63, 80+q)
        a(f"v_add_f32 v62, 1.0, v62\nv_add_f32 v63, 1.0, v63\nv_cvt_pk_bf16_f32 v{80+q}, v62, v63")
    a("s_waitcnt vmcnt(0)")
    a.stamp()
    a("""v_and_b32 v57, 7, v1
s_movk_i32 s13, 896
v_mul_lo_u32 v57, v57, s13
v_add_u32 v57, v57, v7
v_bfrev_b32 v56, 1
v_cmp_gt_u32 vcc, 8, v2
v_cndmask_b32 v57, v56, v57, vcc
s_cmp_lg_u32 s2, 0
s_cbranch_scc1 K4_nox1
buffer_store_dwordx4 v[44:47], v57, s[40:43], 0 offen offset:256
buffer_store_dwordx4 v[48:51], v57, s[40:43], 0 offen offset:320
K4_nox1:
s_nop 1
v_mov_b32 v58, v52
v_mov_b32 v59, v52
v_mov_b32 v60, v53
v_mov_b32 v61, v53""")
    for q in range(8):
        unpack(a, 62, 63, 44+q)
        a("v_pk_add_f32 v[62:63], v[62:63], v[58:59] neg_lo:[0,1] neg_hi:[0,1]")
        rnd_pair(a, 62)
        a("v_pk_mul_f32 v[62:63], v[62:63], v[60:61]")
        rnd_pair(a, 62)
        unpack(a, 114, 115, 80+q)
        unpack(a, 116, 117, 88+q)
        a(f"v_pk_mul_f32 v[62:63], v[62:63], v[114:115]")
        rnd_pair(a, 62)
        a(f"v_pk_add_f32 v[62:63], v[62:63], v[116:117]")
        a(f"v_cvt_pk_bf16_f32 v{44+q}, v62, v63")
    a("""s_movk_i32 s13, 7168
s_cmp_lg_u32 s2, 0
s_cbranch_scc1 K4_noh2
buffer_store_dwordx4 v[44:47], v57, s[40:43], s13 offen offset:256
buffer_store_dwordx4 v[48:51], v57, s[40:43], s13 offen offset:320
K4_noh2:
v_mfma_f32_16x16x32_bf16 v[8:11], v[44:47], v[64:67], 0
v_mfma_f32_16x16x32_bf16 v[12:15], v[44:47], v[72:75], 0
v_mfma_f32_16x16x32_bf16 v[8:11], v[48:51], v[68:71], v[8:11]
v_mfma_f32_16x16x32_bf16 v[12:15], v[48:51], v[76:79], v[12:15]
v_lshlrev_b32 v17, 11, v4
v_lshl_add_u32 v17, v1, 4, v17
ds_write_b128 v17, v[8:11] offset:256
ds_write_b128 v17, v[12:15] offset:1280
s_waitcnt lgkmcnt(0)
s_barrier
v_cmp_gt_u32 vcc, 32, v0
s_and_saveexec_b64 s[44:45], vcc
s_cbranch_execz K4_join
v_lshlrev_b32 v17, 4, v0""")
    RB = [64, 72, 80, 128, 136, 144, 152]
    for m in range(7):
        rb = RB[m]
        a(f"ds_read_b128 v[{rb}:{rb+3}], v17 offset:{256+2048*m}\nds_read_b128 v[{rb+4}:{rb+7}], v17 offset:{1280+2048*m}")
    a("s_waitcnt lgkmcnt(0)")
    for k in range(8):
        a(f"""v_add_f32 v{64+k}, v{64+k}, v{72+k}
v_add_f32 v{80+k}, v{80+k}, v{128+k}
v_add_f32 v{136+k}, v{136+k}, v{144+k}
v_add_f32 v{64+k}, v{64+k}, v{152+k}
v_add_f32 v{80+k}, v{80+k}, v{136+k}
v_add_f32 v{64+k}, v{64+k}, v{80+k}""")
    for k in (64, 66, 68, 70): rnd_pair(a, k)
    for j in range(4): silu_inplace(a, 64+j, 72, 15)
    for k in (64, 66): rnd_pair(a, k)
    a("""v_pk_mul_f32 v[64:65], v[64:65], v[68:69]
v_pk_mul_f32 v[66:67], v[66:67], v[70:71]""")
    rnd_pair(a, 64); rnd_pair(a, 66)
    a("""v_lshlrev_b32 v17, 5, v2
v_lshl_add_u32 v17, v3, 4, v17
ds_write_b128 v17, v[64:67]
s_waitcnt lgkmcnt(0)
K4_join:
s_mov_b64 exec, s[44:45]
s_barrier
v_mov_b32 v17, 0""")
    a.stamp()
    a("v_lshlrev_b32 v112, 1, v0")
    for i in range(16):
        a(f"ds_read_u16 v{96+i}, v112 offset:{45056+896*i}")
    a("s_waitcnt lgkmcnt(0)")
    AB = [64, 72, 80, 88, 128, 136, 144, 152]
    for i in range(16):
        ab = AB[i%8]
        a(f"ds_read_b128 v[{ab}:{ab+3}], v17 offset:{32*i}\nds_read_b128 v[{ab+4}:{ab+7}], v17 offset:{32*i+16}")
        a(f"v_lshlrev_b32 v{96+i}, 16, v{96+i}")
        if i % 8 == 7:
            for k in range(8):
                ii = i - 7 + k
                a(f"s_waitcnt lgkmcnt({14-2*k})")
                for tp in range(4):
                    src = AB[k] + 2*tp
                    wb = 96 + (ii & ~1)
                    if ii == 0:
                        a(f"v_pk_mul_f32 v[{8+2*tp}:{9+2*tp}], v[{src}:{src+1}], v[{wb}:{wb+1}] op_sel_hi:[1,0]")
                    elif ii & 1:
                        a(f"v_pk_fma_f32 v[{8+2*tp}:{9+2*tp}], v[{src}:{src+1}], v[{wb}:{wb+1}], v[{8+2*tp}:{9+2*tp}] op_sel:[0,1,0] op_sel_hi:[1,1,1]")
                    else:
                        a(f"v_pk_fma_f32 v[{8+2*tp}:{9+2*tp}], v[{src}:{src+1}], v[{wb}:{wb+1}], v[{8+2*tp}:{9+2*tp}] op_sel_hi:[1,0,1]")
    a("s_mul_i32 s60, s2, 14336\nv_lshlrev_b32 v17, 2, v0")
    for t in range(8):
        a(f"s_add_u32 s14, s60, {1792*t}\nbuffer_store_dword v{8+t}, v17, s[56:59], s14 offen")
    a.stamp(); a.dump_stamps(3)
    a("""K4_end:
s_endpgm""")
    return a.finalize(), 160


def gen_k5():
    a = Asm()
    a.stamp()
    a(f"""s_cmp_ge_u32 s2, 56
s_cbranch_scc1 K5_end
s_load_dwordx2 s[4:5], s[0:1], {KA['ws']}
s_load_dwordx2 s[10:11], s[0:1], {KA['out']}
s_mul_i32 s12, s2, 37
s_lshr_b32 s12, s12, 8
s_mul_i32 s13, s12, 7
s_sub_u32 s13, s2, s13
v_and_b32 v1, 63, v0
v_lshrrev_b32 v2, 6, v0
s_mov_b32 s14, {28*14336}
v_mul_lo_u32 v3, v2, s14
v_lshl_add_u32 v3, v1, 2, v3
s_mul_i32 s15, s12, 1792
s_lshl_b32 s16, s13, 8
s_add_u32 s15, s15, s16
v_add_u32 v3, s15, v3
s_lshl_b32 s16, s13, 7
v_lshl_add_u32 v4, v1, 1, s16
s_mul_i32 s17, s12, 896
s_lshl_b32 s18, s12, 2
s_waitcnt lgkmcnt(0)""")
    srd(a, 20, 4, 112*14336, WS_PART)
    srd(a, 28, 4, 5376, WS_MOD)
    srd(a, 40, 4, 256+2*7168, WS_SEL)
    srd(a, 44, 10, XSZ)
    a(f"""s_add_u32 s6, s4, {WS_SEL}
s_addc_u32 s7, s5, 0
s_add_u32 s6, s6, s18
s_addc_u32 s7, s7, 0
s_load_dword s24, s[6:7], 0
s_load_dword s25, s[6:7], 32""")
    for i in range(28):
        a(f"s_mov_b32 s14, {14336*i}\nbuffer_load_dword v{8+i}, v3, s[20:23], s14 offen")
    a(f"""s_movk_i32 s14, 4480
buffer_load_ushort v40, v4, s[28:31], s14 offen
s_add_u32 s14, s17, 256
buffer_load_ushort v41, v4, s[40:43], s14 offen
s_add_u32 s14, s17, {256+7168}
buffer_load_ushort v42, v4, s[40:43], s14 offen""")
    for i in range(0, 28, 4):
        a(f"s_waitcnt vmcnt({27-i} )".replace(" )", ")"))
        if i == 0:
            a("v_add_f32 v8, v8, v9\nv_add_f32 v10, v10, v11")
        else:
            a(f"v_add_f32 v8, v8, v{8+i}\nv_add_f32 v10, v10, v{9+i}\nv_add_f32 v8, v8, v{10+i}\nv_add_f32 v10, v10, v{11+i}")
    a.stamp()
    a("""v_add_f32 v8, v8, v10
v_lshlrev_b32 v5, 2, v0
ds_write_b32 v5, v8
s_waitcnt lgkmcnt(0)
s_barrier
v_cmp_gt_u32 vcc, 64, v0
s_and_saveexec_b64 s[48:49], vcc
s_cbranch_execz K5_end
ds_read_b32 v9, v5 offset:256
ds_read_b32 v10, v5 offset:512
ds_read_b32 v11, v5 offset:768
s_waitcnt lgkmcnt(0)
v_add_f32 v8, v8, v9
v_add_f32 v10, v10, v11
v_add_f32 v8, v8, v10""")
    bf16r(a, 8, 8)
    a("v_mul_f32 v8, s25, v8")
    bf16r(a, 8, 8)
    a("""s_waitcnt vmcnt(0)
v_lshlrev_b32 v40, 16, v40
v_lshlrev_b32 v41, 16, v41
v_lshlrev_b32 v42, 16, v42
v_add_f32 v8, v8, v42""")
    bf16r(a, 8, 8)
    a("v_mul_f32 v8, v8, v40")
    bf16r(a, 8, 8)
    a("""v_add_f32 v8, v8, v41
v_cvt_pk_bf16_f32 v8, v8, v8
s_and_b32 s24, s24, 0x7ff
s_mul_i32 s24, s24, 896
buffer_store_short v8, v4, s[44:47], s24 offen""")
    a.stamp(); a.dump_stamps(4)
    a("K5_end:\ns_endpgm")
    return a.finalize(), 48
```

```python
import sys, struct
sys.path.insert(0, "work")
from asmgen import Asm

NAME = "adaLN_cond__ssm_conv_s4__moe_arch_mod__prompt"
KA = dict(x=0, are=8, aim=16, bre=24, bim=32, cre=40, cim=48, ldt=56, dsk=64, bx=72, wr=80, wg=88, wu=96, wd=104, c=112, wmod=120, out=128, dbg=136, ws=144)
WS_MOD = 0x0000; WS_R = 0x4000; WS_ST2 = 0x6000; WS_ACT = 0xA000; WS_SEL = 0x11000
WS_KC = 0x20000; KC_STRIDE = 2624
WS_XNT = 0x200000; WS_YYT = 0x400000; WS_X1 = 0x600000; WS_PART = 0xA00000
XSZ = 2048*448*2
LOG2E = 0x3fb8aa3b
INV2PI = 0x3e22f983
def f2u(f): return struct.unpack("<I", struct.pack("<f", f))[0]

def srd(a, d, ptr_s, size, off=0):
    if off:
        a(f"s_add_u32 s{d}, s{ptr_s}, {off}\ns_addc_u32 s{d+1}, s{ptr_s+1}, 0")
    else:
        a(f"s_mov_b32 s{d}, s{ptr_s}\ns_mov_b32 s{d+1}, s{ptr_s+1}")
    a(f"s_mov_b32 s{d+2}, {size}\ns_mov_b32 s{d+3}, 0x00020000")

def bf16r(a, dst, src):
    a(f"v_cvt_pk_bf16_f32 v{dst}, v{src}, v{src}\nv_and_b32 v{dst}, 0xffff0000, v{dst}")

def kernel_header(name):
    return f".globl {name}\n.p2align 8\n.type {name},@function\n{name}:\n"

def kernel_desc(name, vgpr, sgpr=96):
    acc = (vgpr + 3) // 4 * 4
    return f""".amdhsa_kernel {name}
  .amdhsa_next_free_vgpr {vgpr}
  .amdhsa_next_free_sgpr {sgpr}
  .amdhsa_accum_offset {acc}
  .amdhsa_group_segment_fixed_size 0
  .amdhsa_kernarg_size 152
  .amdhsa_user_sgpr_count 2
  .amdhsa_user_sgpr_kernarg_segment_ptr 1
  .amdhsa_system_sgpr_workgroup_id_x 1
  .amdhsa_float_denorm_mode_32 3
  .amdhsa_float_denorm_mode_16_64 3
.end_amdhsa_kernel
"""

def sum8lanes(a, v, tmp):
    a(f"""v_add_f32 v{v}, v{v}, v{v} quad_perm:[1,0,3,2] row_mask:0xf bank_mask:0xf
v_add_f32 v{v}, v{v}, v{v} quad_perm:[2,3,0,1] row_mask:0xf bank_mask:0xf
v_add_f32 v{v}, v{v}, v{v} row_half_mirror row_mask:0xf bank_mask:0xf""")

def ln_stats(a, X, n, vm, vrs, t0, t1, t2, t3, s_inv, s_eps):
    T = [t0, t1, t2, t3]
    for i in range(4): a(f"v_add_f32 v{T[i]}, v{X+i}, v{X+i+4}")
    for i in range(8, n): a(f"v_add_f32 v{T[i%4]}, v{T[i%4]}, v{X+i}")
    a(f"v_add_f32 v{t0}, v{t0}, v{t1}\nv_add_f32 v{t2}, v{t2}, v{t3}\nv_add_f32 v{t0}, v{t0}, v{t2}")
    sum8lanes(a, t0, t1)
    a(f"v_mul_f32 v{vrs}, s{s_inv}, v{t0}")
    for i in range(4):
        a(f"v_sub_f32 v{vm}, v{X+i}, v{vrs}\nv_mul_f32 v{T[i]}, v{vm}, v{vm}")
    for i in range(4, n):
        a(f"v_sub_f32 v{vm}, v{X+i}, v{vrs}\nv_fmac_f32 v{T[i%4]}, v{vm}, v{vm}")
    a(f"v_add_f32 v{t0}, v{t0}, v{t1}\nv_add_f32 v{t2}, v{t2}, v{t3}\nv_add_f32 v{t0}, v{t0}, v{t2}")
    sum8lanes(a, t0, t1)
    bf16r(a, vm, vrs)
    a(f"v_mul_f32 v{t0}, s{s_inv}, v{t0}")
    bf16r(a, t0, t0)
    a(f"v_add_f32 v{t0}, s{s_eps}, v{t0}")
    bf16r(a, t0, t0)
    a(f"v_sqrt_f32 v{t0}, v{t0}")
    bf16r(a, t0, t0)
    a(f"v_rcp_f32 v{vrs}, v{t0}")

N_KG, N_LN, N_MOD = 448, 64, 84
def gen_k1():
    a = Asm()
    a.stamp()
    a(f"""s_cmp_ge_u32 s2, {N_KG+N_LN+N_MOD}
s_cbranch_scc1 K1_end
s_load_dwordx2 s[4:5], s[0:1], {KA['ws']}
s_cmp_lt_u32 s2, {N_LN}
s_cbranch_scc1 K1_ln
s_cmp_lt_u32 s2, {N_LN+N_MOD}
s_cbranch_scc1 K1_mod
s_mov_b32 s90, s2
s_sub_u32 s2, s2, {N_LN+N_MOD}""")
    a(f"""s_load_dwordx4 s[8:11], s[0:1], {KA['are']}
s_load_dwordx4 s[12:15], s[0:1], {KA['bre']}
s_load_dwordx4 s[16:19], s[0:1], {KA['cre']}
s_load_dwordx2 s[20:21], s[0:1], {KA['ldt']}
v_and_b32 v1, 63, v0
v_and_b32 v2, 15, v1
v_lshrrev_b32 v3, 4, v1
v_lshrrev_b32 v4, 6, v0
s_lshl_b32 s22, s2, 9
v_lshlrev_b32 v5, 7, v4
v_lshl_add_u32 v5, v3, 5, v5
v_add_u32 v5, s22, v5
s_waitcnt lgkmcnt(0)""")
    for k in range(6):
        srd(a, 24+4*k, 8+2*k, 448*256*2)
    for k in range(6):
        a(f"buffer_load_dwordx4 v[{16+8*k}:{19+8*k}], v5, s[{24+4*k}:{27+4*k}], 0 offen")
        a(f"buffer_load_dwordx4 v[{20+8*k}:{23+8*k}], v5, s[{24+4*k}:{27+4*k}], 0 offen offset:16")
    a(f"""s_lshl_b32 s23, s2, 1
s_and_b32 s23, s23, 0xfffffffc
s_add_u32 s20, s20, s23
s_addc_u32 s21, s21, 0
s_load_dword s23, s[20:21], 0""")
    srd(a, 48, 4, 448*KC_STRIDE, WS_KC)
    a(f"""v_lshlrev_b32 v6, 3, v2
v_lshrrev_b32 v10, 3, v2
v_and_b32 v11, 7, v2
v_lshl_add_u32 v7, v10, 7, v11
v_lshrrev_b32 v12, 2, v11
v_and_b32 v13, 3, v11
v_lshlrev_b32 v13, 1, v13
v_lshl_add_u32 v12, v12, 7, v13
v_add_u32 v12, 256, v12
v_lshrrev_b32 v13, 1, v11
v_and_b32 v14, 1, v11
v_lshlrev_b32 v14, 2, v14
v_lshl_add_u32 v13, v13, 7, v14
v_add_u32 v13, 512, v13
v_cmp_eq_u32 vcc, 0, v10
v_cndmask_b32 v8, v13, v12, vcc
v_lshlrev_b32 v12, 7, v2
v_add_u32 v12, 1024, v12
v_cmp_ge_u32 vcc, 8, v2
v_cndmask_b32 v9, 0, v12, vcc
v_lshlrev_b32 v10, 2, v2
ds_write_b32 v10, v7 offset:12288
ds_write_b32 v10, v8 offset:12352
ds_write_b32 v10, v9 offset:12416
v_cvt_f32_u32 v6, v6
v_cvt_f32_u32 v7, v7
v_cvt_f32_u32 v8, v8
v_cvt_f32_u32 v9, v9
s_waitcnt lgkmcnt(0)
s_and_b32 s57, s2, 1
s_lshl_b32 s57, s57, 4
s_lshr_b32 s23, s23, s57
s_lshl_b32 s23, s23, 16
s_mov_b32 s52, {LOG2E}
s_mov_b32 s53, {INV2PI}
v_mov_b32 v10, s23
v_mul_f32 v10, s52, v10
v_exp_f32 v10, v10""")
    bf16r(a, 10, 10)
    for r in range(64, 76): a(f"v_mov_b32 v{r}, 0")
    a("s_waitcnt vmcnt(0)")
    a.stamp()
    for G in range(16):
        reg = G >> 1
        for k, dst in enumerate((80, 81, 82, 83, 84, 85)):
            src = 16 + 8*k + reg
            if G & 1: a(f"v_and_b32 v{dst}, 0xffff0000, v{src}")
            else: a(f"v_lshlrev_b32 v{dst}, 16, v{src}")
        a(f"""v_mul_f32 v80, v10, v80
v_mul_f32 v81, v10, v81
v_mul_f32 v82, v10, v82
v_mul_f32 v83, v10, v83
v_mul_f32 v80, s52, v80
v_mul_f32 v81, s53, v81
v_mul_f32 v86, v84, v82
v_mul_f32 v87, v84, v83
v_fma_f32 v86, -v85, v83, v86
v_fmac_f32 v87, v85, v82""")
        for k in range(4):
            a(f"v_mul_f32 v{96+k}, v80, v{6+k}\nv_mul_f32 v{100+k}, v81, v{6+k}")
        for k in range(4):
            a(f"v_exp_f32 v{96+k}, v{96+k}\nv_fract_f32 v{100+k}, v{100+k}")
        for k in range(4):
            a(f"v_cos_f32 v{88+2*k}, v{100+k}\nv_sin_f32 v{89+2*k}, v{100+k}")
        for k in range(4):
            a(f"v_mul_f32 v{88+2*k}, v{96+k}, v{88+2*k}\nv_mul_f32 v{89+2*k}, v{96+k}, v{89+2*k}")
        a(f"""v_mul_f32 v104, v86, v88
v_mul_f32 v105, v86, v89
v_fma_f32 v104, -v87, v89, v104
v_fma_f32 v105, -v87, v88, -v105""")
        for T in range(3):
            a(f"v_mfma_f32_16x16x4_f32 v[{64+4*T}:{67+4*T}], v{90+2*T}, v104, v[{64+4*T}:{67+4*T}]")
        for T in range(3):
            a(f"v_mfma_f32_16x16x4_f32 v[{64+4*T}:{67+4*T}], v{91+2*T}, v105, v[{64+4*T}:{67+4*T}]")
    a.stamp()
    a(f"""v_mul_u32_u24 v10, 3072, v4
v_lshl_add_u32 v10, v1, 4, v10
ds_write_b128 v10, v[64:67]
ds_write_b128 v10, v[68:71] offset:1024
ds_write_b128 v10, v[72:75] offset:2048
s_waitcnt lgkmcnt(0)
s_barrier
v_cmp_gt_u32 vcc, 192, v0
s_and_saveexec_b64 s[54:55], vcc
s_cbranch_execz K1_end
v_lshlrev_b32 v10, 4, v0
ds_read_b128 v[16:19], v10
ds_read_b128 v[20:23], v10 offset:3072
ds_read_b128 v[24:27], v10 offset:6144
ds_read_b128 v[28:31], v10 offset:9216
v_lshlrev_b32 v11, 6, v4
v_lshl_add_u32 v11, v3, 4, v11
ds_read_b128 v[32:35], v11 offset:12288
s_mul_i32 s56, s2, {KC_STRIDE}
v_lshlrev_b32 v12, 3, v2
s_waitcnt lgkmcnt(0)""")
    for r in range(4):
        a(f"""v_add_f32 v{16+r}, v{16+r}, v{20+r}
v_add_f32 v{24+r}, v{24+r}, v{28+r}
v_add_f32 v{16+r}, v{16+r}, v{24+r}
v_add_u32 v{36+r}, v{32+r}, v12
v_cvt_f32_u32 v{40+r}, v{36+r}
v_lshrrev_b32 v{40+r}, 16, v{40+r}
v_subrev_u32 v{40+r}, 17024, v{40+r}
v_cmp_gt_u32 vcc, 128, v{36+r}
v_cndmask_b32 v{40+r}, v{40+r}, v{36+r}, vcc
v_lshlrev_b32 v{40+r}, 2, v{40+r}""")
        a(f"""v_cmp_lt_u32 vcc, 2048, v{36+r}
v_cndmask_b32 v{40+r}, v{40+r}, -1, vcc
v_cmp_eq_u32 vcc, 0, v{32+r}
v_cmp_eq_u32 s[58:59], 2, v4
s_and_b64 vcc, vcc, s[58:59]
v_cndmask_b32 v{40+r}, v{40+r}, -1, vcc
buffer_store_dword v{16+r}, v{40+r}, s[48:51], s56 offen""")
    a("s_mov_b32 s2, s90")
    a.stamp(); a.dump_stamps(0); a.nst = 1
    a("s_branch K1_end")
    a(f"""K1_ln:
s_setprio 3
s_load_dwordx2 s[6:7], s[0:1], {KA['x']}
s_lshl_b32 s8, s2, 5
v_lshrrev_b32 v1, 3, v0
v_add_u32 v1, s8, v1
v_and_b32 v2, 7, v0
s_movk_i32 s9, 896
v_mul_lo_u32 v3, v1, s9
v_lshl_add_u32 v3, v2, 4, v3
s_waitcnt lgkmcnt(0)""")
    srd(a, 12, 6, XSZ)
    srd(a, 16, 4, XSZ, WS_XNT)
    for m in range(7):
        a(f"buffer_load_dwordx4 v[{8+4*m}:{11+4*m}], v3, s[12:15], 0 offen offset:{128*m}")
    a(f"""s_mov_b32 s20, {f2u(1.0/448)}
s_mov_b32 s21, {f2u(1e-5)}
v_lshlrev_b32 v4, 15, v2
v_lshl_add_u32 v4, v1, 2, v4""")
    X = 40
    for m in range(7):
        a(f"s_waitcnt vmcnt({6-m})")
        for q in range(4):
            a(f"v_lshlrev_b32 v{X+8*m+2*q}, 16, v{8+4*m+q}\nv_and_b32 v{X+8*m+2*q+1}, 0xffff0000, v{8+4*m+q}")
    a.stamp()
    ln_stats(a, X, 56, 100, 101, 102, 103, 104, 105, 20, 21)
    a.stamp()
    for m in range(7):
        for q in range(4):
            e = X+8*m+2*q
            a(f"""v_sub_f32 v{e}, v{e}, v100
v_sub_f32 v{e+1}, v{e+1}, v100
v_cvt_pk_bf16_f32 v{e}, v{e}, v{e+1}
v_and_b32 v{e+1}, 0xffff0000, v{e}
v_lshlrev_b32 v{e}, 16, v{e}
v_mul_f32 v{e}, v{e}, v101
v_mul_f32 v{e+1}, v{e+1}, v101
v_cvt_pk_bf16_f32 v{e}, v{e}, v{e+1}
s_mov_b32 s22, {m*262144+q*8192}
buffer_store_dword v{e}, v4, s[16:19], s22 offen""")
    a.stamp(); a.dump_stamps(0); a.nst = 1
    a("s_branch K1_end")
    a(f"""K1_mod:
s_setprio 3
s_load_dwordx4 s[8:11], s[0:1], {KA['c']}
s_sub_u32 s6, s2, {N_LN}
s_lshl_b32 s7, s6, 6
v_lshrrev_b32 v1, 2, v0
v_and_b32 v2, 3, v0
s_movk_i32 s12, 5376
v_mul_lo_u32 v3, v1, s12
v_lshl_add_u32 v3, v2, 4, v3
v_add_u32 v3, s7, v3
v_lshlrev_b32 v4, 1, v1
s_waitcnt lgkmcnt(0)""")
    srd(a, 16, 8, 896)
    srd(a, 20, 10, 448*5376)
    srd(a, 24, 4, 5376, WS_MOD)
    for it in range(7):
        a(f"buffer_load_ushort v{8+it}, v4, s[16:19], 0 offen offset:{128*it}")
    for it in range(7):
        a(f"s_mov_b32 s13, {it*344064}\nbuffer_load_dwordx4 v[{16+4*it}:{19+4*it}], v3, s[20:23], s13 offen")
    a(f"s_mov_b32 s14, {LOG2E | 0x80000000}")
    a("s_waitcnt vmcnt(7)")
    for it in range(7):
        a(f"""v_lshlrev_b32 v{8+it}, 16, v{8+it}
v_mul_f32 v50, s14, v{8+it}
v_exp_f32 v50, v50
v_add_f32 v50, 1.0, v50
v_rcp_f32 v50, v50
v_mul_f32 v{8+it}, v{8+it}, v50""")
        bf16r(a, 8+it, 8+it)
    for it in range(7):
        a(f"s_waitcnt vmcnt({6-it})")
        for q in range(4):
            a(f"v_lshlrev_b32 v50, 16, v{16+4*it+q}\nv_and_b32 v51, 0xffff0000, v{16+4*it+q}")
            if it == 0:
                a(f"v_mul_f32 v{52+2*q}, v{8+it}, v50\nv_mul_f32 v{53+2*q}, v{8+it}, v51")
            else:
                a(f"v_fmac_f32 v{52+2*q}, v{8+it}, v50\nv_fmac_f32 v{53+2*q}, v{8+it}, v51")
    a.stamp()
    for q in range(8):
        a(f"v_add_f32 v{52+q}, v{52+q}, v{52+q} row_ror:4 row_mask:0xf bank_mask:0xf")
    for q in range(8):
        a(f"v_add_f32 v{52+q}, v{52+q}, v{52+q} row_ror:8 row_mask:0xf bank_mask:0xf")
    a(f"""v_lshrrev_b32 v5, 4, v0
v_lshlrev_b32 v5, 7, v5
v_lshl_add_u32 v5, v2, 5, v5
ds_write_b128 v5, v[52:55]
ds_write_b128 v5, v[56:59] offset:16
s_waitcnt lgkmcnt(0)
s_barrier
v_cmp_gt_u32 vcc, 32, v0
s_and_saveexec_b64 s[30:31], vcc
s_cbranch_execz K1_end
v_lshlrev_b32 v5, 2, v0""")
    for q in range(16):
        a(f"ds_read_b32 v{60+q}, v5 offset:{128*q}")
    a("s_waitcnt lgkmcnt(0)")
    for st in (8, 4, 2, 1):
        for q in range(st):
            a(f"v_add_f32 v{60+q}, v{60+q}, v{60+q+st}")
    a(f"""v_cvt_pk_bf16_f32 v60, v60, v60
v_lshlrev_b32 v5, 1, v0
buffer_store_short v60, v5, s[24:27], s7 offen""")
    a.stamp(); a.stamp(); a.dump_stamps(0)
    a("""K1_end:
s_endpgm""")
    return a.finalize(), 112

import re
def all_sc1(body):
    out = []
    for ln in body.split("\n"):
        if ln.strip().startswith("buffer_store") and " sc1" not in ln and "s[92:95]" not in ln:
            ln = ln + " sc1"
        out.append(ln)
    return "\n".join(out)
KERNELS = []
def build(which):
    launches = []; text = ""; descs = ""
    for (nm, fn, grid, block, lds) in which:
        body, vg = fn()
        body = all_sc1(body)
        launches.append(f"; @launch kernel={nm} grid=({grid},1,1) block=({block},1,1) lds={lds}")
        text += kernel_header(nm) + body
        descs += ".p2align 6\n" + kernel_desc(nm, vg)
    hdr = open("cdna_kernels/%s.s.ref" % NAME).read().split("; Override launch geometry")[0]
    out = hdr + "\n".join(launches) + "\n" + '.amdgcn_target "amdgcn-amd-amdhsa--gfx950"\n.text\n' + text + '.section .rodata,"a"\n' + descs
    return out

if __name__ == "__main__":
    import asmgen
    if len(sys.argv) > 2: asmgen.STAMPS = True
    import gen_all
    out = build(gen_all.ALL)
    path = sys.argv[1] if len(sys.argv) > 1 else "cdna_kernels/%s.s" % NAME
    open(path, "w").write(out)
    print("wrote", path, len(out))
```

```python
import re

TRANS = ("v_exp_f32","v_log_f32","v_rcp_f32","v_rsq_f32","v_sqrt_f32","v_sin_f32","v_cos_f32","v_rcp_iflag_f32")
MFMA_INFO = {
    "v_mfma_f32_16x16x32_bf16": ("xdl", 4),
    "v_mfma_f32_32x32x16_bf16": ("xdl", 8),
    "v_mfma_f32_16x16x16_bf16": ("xdl", 4),
    "v_mfma_f32_16x16x4_f32": ("sgemm", 8),
    "v_mfma_f32_32x32x2_f32": ("sgemm", 16),
}
IDX = {2:0,4:1,8:2,16:3}

def regs_of(op):
    op = op.strip()
    neg = op.startswith("-")
    if neg: op = op[1:]
    m = re.match(r"^abs\((.*)\)$", op) or re.match(r"^\|(.*)\|$", op)
    if m: op = m.group(1)
    m = re.match(r"^([vsa])(\d+)$", op)
    if m: return {(m.group(1), int(m.group(2)))}
    m = re.match(r"^([vsa])\[(\d+):(\d+)\]$", op)
    if m: return {(m.group(1), i) for i in range(int(m.group(2)), int(m.group(3))+1)}
    if op == "vcc": return {("s", 106), ("s", 107)}
    if op == "vcc_lo": return {("s", 106)}
    if op == "vcc_hi": return {("s", 107)}
    if op == "exec": return {("s", 126), ("s", 127)}
    if op == "m0": return {("s", 124)}
    return set()

class Ins:
    def __init__(self, text):
        self.text = text
        t = text.split(";")[0].strip()
        self.label = t.endswith(":")
        self.w = set(); self.r = set(); self.kind = "other"; self.mn = ""
        self.srcC = set(); self.srcAB = set(); self.dpp = False; self.nstates = 1
        self.widestore = set()
        if self.label or not t or t.startswith("."):
            self.kind = "label" if self.label else "dir"; self.nstates = 0; return
        parts = t.split(None, 1)
        mn = parts[0]; self.mn = mn
        rest = parts[1] if len(parts) > 1 else ""
        ops = []; cur = ""; depth = 0
        for ch in rest:
            if ch == "[": depth += 1
            if ch == "]": depth -= 1
            if ch == "," and depth == 0: ops.append(cur.strip()); cur = ""
            else: cur += ch
        if cur.strip(): ops.append(cur.strip())
        mods = []
        if ops:
            sp = ops[-1].split()
            ops[-1] = sp[0]; mods = sp[1:]
        self.ops = ops; self.mods = mods
        base = re.sub(r"_(e32|e64|dpp|sdwa)$", "", mn)
        self.base = base
        R = lambda lst: set().union(*[regs_of(o) for o in lst]) if lst else set()
        if any(m.startswith(("quad_perm","row_shr","row_shl","row_ror","row_mirror","row_half_mirror","row_bcast","wave_","row_newbcast")) for m in mods):
            self.dpp = True
        if base == "s_nop":
            self.kind = "nop"; self.nstates = int(ops[0], 0) + 1
        elif base in MFMA_INFO:
            self.kind = "mfma"; self.w = R(ops[:1]); self.srcAB = R(ops[1:3]); self.srcC = R(ops[3:4]); self.r = self.srcAB | self.srcC
            self.mclass, self.passes = MFMA_INFO[base]
        elif base.startswith("v_cmp"):
            self.kind = "valu"; self.w = R(ops[:1]); self.r = R(ops[1:])
        elif base in ("v_readfirstlane_b32", "v_readlane_b32"):
            self.kind = "valu"; self.w = R(ops[:1]); self.r = R(ops[1:])
        elif base.startswith("v_permlane") and base.endswith("swap_b32"):
            self.kind = "valu"; self.w = R(ops[:2]); self.r = R(ops[:2])
        elif base in ("v_add_co_u32","v_sub_co_u32","v_addc_co_u32","v_subb_co_u32","v_subrev_co_u32"):
            self.kind = "valu"; self.w = R(ops[:2]); self.r = R(ops[2:])
        elif base.startswith("v_"):
            self.kind = "valu"; self.w = R(ops[:1]); self.r = R(ops[1:])
            if base in ("v_fmac_f32","v_pk_fmac_f16","v_dot2c_f32_bf16","v_writelane_b32") or self.dpp: self.r |= self.w
        elif base.startswith("buffer_load") or base.startswith("global_load"):
            self.kind = "vmem"
            if "lds" in mods or "_lds_" in base: self.r = R(ops)
            else:
                self.w = R(ops[:1]); self.r = R(ops[1:])
                if "d16" in base: self.r |= self.w
        elif base.startswith("buffer_store") or base.startswith("global_store") or base.startswith("buffer_atomic") or base.startswith("global_atomic"):
            self.kind = "vmem"; self.r = R(ops)
            if "atomic" in base and "sc0" in mods: self.w = R(ops[:1])
            if base.endswith("x4") or base.endswith("x3"):
                self.widestore = R(ops[:1]) if base.startswith("buffer") else R(ops[1:2])
        elif base.startswith("ds_read") or base.startswith("ds_bpermute") or base.startswith("ds_swizzle") or base.startswith("ds_permute"):
            self.kind = "ds"; self.w = R(ops[:1]); self.r = R(ops[1:])
        elif base.startswith("ds_"):
            self.kind = "ds"; self.r = R(ops)
        elif base.startswith("s_"):
            self.kind = "salu"
            if base.startswith(("s_cmp","s_waitcnt","s_barrier","s_branch","s_cbranch","s_endpgm","s_setprio","s_sleep")):
                self.r = R(ops)
            else:
                self.w = R(ops[:1]); self.r = R(ops[1:])
                if "saveexec" in base: self.w |= regs_of("exec")
        self.trans = base in TRANS

def need(p, c):
    n = 0
    vw = {x for x in p.w if x[0] in "va"}; sw = {x for x in p.w if x[0] == "s"}
    if p.kind == "valu":
        if p.base.startswith("v_dot") and c.base != p.base and vw & (c.r | c.w): n = max(n, 3)
        if c.kind == "mfma" and vw & c.r: n = max(n, 2)
        if p.trans and c.kind == "valu" and not c.trans and vw & c.r: n = max(n, 1)
        if p.trans and c.kind in ("vmem","ds") and vw & c.r: n = max(n, 1)
        if sw:
            if c.kind == "valu" and sw & c.r:
                n = max(n, 4 if c.base in ("v_readlane_b32","v_writelane_b32") else 2)
            if c.kind == "vmem" and sw & c.r: n = max(n, 5)
            if c.kind == "salu" and sw & c.r: n = max(n, 1)
        if c.kind == "valu" and vw & c.r:
            if c.dpp or c.base.startswith("v_permlane"): n = max(n, 2)
            if c.base in ("v_readfirstlane_b32","v_readlane_b32"): n = max(n, 1)
    if p.kind == "salu":
        if ("s",124) in p.w and c.kind == "vmem" and ("lds" in getattr(c,"mods",[]) or "_lds_" in c.base): n = max(n, 1)
        if p.w & regs_of("exec") and c.kind == "valu" and c.dpp: n = max(n, 0)
    if p.kind == "mfma":
        i = IDX[p.passes]
        full = (5,8,12,20)[i] if p.mclass == "xdl" else (4,6,10,18)[i]
        if c.kind == "mfma":
            if p.w & c.srcAB: n = max(n, full)
            if p.w & c.srcC:
                if c.srcC == p.w and c.base == p.base: n = max(n, 2 if p.passes == 2 else 0)
                else: n = max(n, (4,6,10,18)[i])
            elif p.w & c.w: n = max(n, full)
        elif c.kind in ("valu","vmem","ds"):
            if p.w & (c.r | c.w): n = max(n, full)
        if p.mclass == "xdl" and c.kind == "valu" and p.srcC & c.w: n = max(n, (1,3,7,15)[i])
    if p.widestore:
        if c.kind == "valu" and p.widestore & c.w: n = max(n, 2)
        elif p.widestore & c.w: n = max(n, 1)
    return n

STAMPS = False
class Asm:
    def __init__(self): self.lines = []; self.nst = 0
    def stamp(self):
        if not STAMPS: return
        k = self.nst; self.nst += 1
        import os
        op = "s_memtime" if os.environ.get("CLK") else "s_memrealtime"
        self.lines.append(f"{op} s[{64+2*k}:{65+2*k}]")
    def dump_stamps(self, kid, ws_pair=4):
        if not STAMPS: return
        L = self.lines
        L.append("s_waitcnt lgkmcnt(0)")
        L.append("s_mov_b64 exec, 1")
        L.append(f"s_add_u32 s92, s{ws_pair}, {0x800000 + kid*0x10000}")
        L.append(f"s_addc_u32 s93, s{ws_pair+1}, 0")
        L.append("s_mov_b32 s94, 0x10000")
        L.append("s_mov_b32 s95, 0x00020000")
        L.append("s_lshl_b32 s91, s2, 6")
        L.append("v_lshlrev_b32 v1, 16, v0")
        for k in range(self.nst):
            L.append(f"v_mov_b32 v2, s{64+2*k}")
            L.append(f"buffer_store_dword v2, v1, s[92:95], s91 offen offset:{4*k}")
    def __call__(self, text):
        for ln in text.strip("\n").split("\n"):
            if ln.strip(): self.lines.append(ln.strip())
    def raw(self, text): self.lines.append(text)
    def finalize(self):
        out = []
        for ln in self.lines:
            ins = Ins(ln)
            if ins.kind in ("label","dir") or not ins.mn:
                out.append(ins); continue
            dist = 0; req = 0
            for p in reversed(out):
                if p.kind in ("label","dir"): continue
                if dist >= 24: break
                k = need(p, ins)
                if k > dist: req = max(req, k - dist)
                dist += p.nstates
            while req > 0:
                k = min(req, 16)
                out.append(Ins(f"s_nop {k-1}")); req -= k
            out.append(ins)
        txt = []
        for i in out:
            if i.kind in ("label","dir"): txt.append(i.text)
            else: txt.append("    " + i.text)
        return "\n".join(txt) + "\n"
```

```python
from gen import *
from gen_k1 import cmul, WS_MODP, REG
from gen_k2 import DSQ, UCS, UCD, KH, KHD
import asmgen

KCL = KH + 2*KHD
PT = KCL + 2*2624
K12_LDS = PT + 256
SPIN_MAX = 200000
WS_GO = 0x1E0000
WS_WPK = 0xC00000

def gen_k12():
    a = Asm()
    a.stamp()
    a(f"""s_cmp_ge_u32 s2, 256
s_cbranch_scc1 KA_end
s_load_dwordx2 s[4:5], s[0:1], {KA['ws']}
s_load_dwordx2 s[62:63], s[0:1], {KA['dbg']}
v_lshrrev_b32 v4, 6, v0
v_and_b32 v1, 63, v0
v_readfirstlane_b32 s3, v4
s_cmp_eq_u32 s3, 8
s_cbranch_scc1 KA_ln
s_cmp_eq_u32 s3, 9
s_cbranch_scc1 KA_mod
s_cmp_ge_u32 s2, 224
s_cbranch_scc1 KA_rep""")
    a(f"""s_mov_b32 s90, s2
s_and_b32 s56, s2, 7
s_lshr_b32 s57, s2, 5
s_lshl_b32 s57, s57, 3
s_add_u32 s56, s56, s57
s_lshl_b32 s56, s56, 2
s_bfe_u32 s57, s2, 0x20003
s_add_u32 s2, s56, s57
s_load_dwordx4 s[8:11], s[0:1], {KA['are']}
s_load_dwordx4 s[12:15], s[0:1], {KA['bre']}
s_load_dwordx4 s[16:19], s[0:1], {KA['cre']}
s_load_dwordx4 s[20:23], s[0:1], {KA['ldt']}
s_lshl_b32 s56, s2, 10
v_lshlrev_b32 v5, 1, v0
v_add_u32 v5, s56, v5
v_and_b32 v2, 15, v1
v_lshrrev_b32 v3, 4, v1
s_mul_i32 s60, s3, {REG}
s_lshl_b32 s57, s2, 2
s_waitcnt lgkmcnt(0)""")
    for k in range(6):
        srd(a, 24+4*k, 8+2*k, 448*256*2)
    for k in range(6):
        a(f"buffer_load_ushort v{16+k}, v5, s[{24+4*k}:{27+4*k}], 0 offen")
    a(f"""s_add_u32 s20, s20, s57
s_addc_u32 s21, s21, 0
s_load_dword s58, s[20:21], 0
s_add_u32 s22, s22, s57
s_addc_u32 s23, s23, 0
s_load_dword s59, s[22:23], 0
s_mov_b32 m0, s60""")
    a(f"""v_lshrrev_b32 v10, 3, v2
v_and_b32 v11, 7, v2
v_lshl_add_u32 v7, v10, 7, v11
v_lshrrev_b32 v12, 2, v11
v_and_b32 v13, 3, v11
v_lshlrev_b32 v13, 1, v13
v_lshl_add_u32 v12, v12, 7, v13
v_add_u32 v12, 256, v12
v_lshrrev_b32 v13, 1, v11
v_and_b32 v14, 1, v11
v_lshlrev_b32 v14, 2, v14
v_lshl_add_u32 v13, v13, 7, v14
v_add_u32 v13, 512, v13
v_cmp_eq_u32 vcc, 0, v10
v_cndmask_b32 v8, v13, v12, vcc
v_lshlrev_b32 v12, 7, v2
v_add_u32 v12, 1024, v12
v_cmp_ge_u32 vcc, 8, v2
v_cndmask_b32 v9, 0, v12, vcc
v_lshlrev_b32 v10, 2, v2
v_add_u32 v10, {PT}, v10
ds_write_b32 v10, v7
ds_write_b32 v10, v8 offset:64
ds_write_b32 v10, v9 offset:128
v_mul_u32_u24 v6, 544, v2
v_lshl_add_u32 v6, v3, 4, v6
v_add_u32 v6, s60, v6
s_mov_b32 s52, {LOG2E}
s_mov_b32 s53, {INV2PI}
s_mov_b32 s50, 0x0000bf80
s_mov_b32 s51, 0xbf800000
s_lshr_b32 s57, s3, 2
s_lshl_b32 s57, s57, 4
s_waitcnt lgkmcnt(0)
s_lshr_b32 s58, s58, s57
s_lshl_b32 s58, s58, 16
v_mov_b32 v10, s58
v_mul_f32 v10, s52, v10
v_exp_f32 v10, v10""")
    bf16r(a, 10, 10)
    a("s_waitcnt vmcnt(0)")
    a.stamp()
    for k in range(6): a(f"v_lshlrev_b32 v{16+k}, 16, v{16+k}")
    a(f"""v_mul_f32 v16, v10, v16
v_mul_f32 v17, v10, v17
v_mul_f32 v18, v10, v18
v_mul_f32 v19, v10, v19
v_mul_f32 v16, s52, v16
v_mul_f32 v17, s53, v17""")
    Z = {e: 24 + 2*i for i, e in enumerate([1,2,4,8,16,32,64,128,256,512,1024,2048,3,5,6,7,384,640,768,896])}
    dirs = [1, 8, 128, 1024]
    for k, e in enumerate(dirs):
        a(f"v_mul_f32 v{64+k}, {float(e)}, v16\nv_mul_f32 v{68+k}, {float(e)}, v17")
    for k, e in enumerate(dirs):
        a(f"v_exp_f32 v{64+k}, v{64+k}\nv_fract_f32 v{68+k}, v{68+k}")
    for k, e in enumerate(dirs):
        a(f"v_cos_f32 v{Z[e]}, v{68+k}\nv_sin_f32 v{Z[e]+1}, v{68+k}")
    B = [72 + 2*b for b in range(16)]
    cmul(a, B[0], 20, 18)
    a(f"v_xor_b32 v{B[0]+1}, 0x80000000, v{B[0]+1}")
    for k, e in enumerate(dirs):
        a(f"v_mul_f32 v{Z[e]}, v{64+k}, v{Z[e]}\nv_mul_f32 v{Z[e]+1}, v{64+k}, v{Z[e]+1}")
    def sq(e2, e): cmul(a, Z[e2], Z[e], Z[e])
    sq(16, 8); sq(2, 1); sq(256, 128); sq(2048, 1024); sq(32, 16); sq(4, 2); sq(512, 256); sq(64, 32)
    tmpi = [0]
    TH = [104, 105, 106]; TT = [108, 110, 112]; TL = [107, 114, 115]
    pend = []
    def split_flush():
        while pend:
            t, l, row = pend.pop(0)
            a(f"""v_cvt_pk_bf16_f32 v{l}, v{t}, v{t+1}
ds_write_addtid_b32 v{l} offset:{row*544+256}""")
    def split_write(x, row):
        k = tmpi[0] % 3; tmpi[0] += 1
        h, t, l = TH[k], TT[k], TL[k]
        a(f"""v_cvt_pk_bf16_f32 v{h}, v{x}, v{x+1}
v_dot2_f32_bf16 v{t}, v{h}, s50, v{x}
v_dot2_f32_bf16 v{t+1}, v{h}, s51, v{x+1}
ds_write_addtid_b32 v{h} offset:{row*544}""")
        split_flush()
        pend.append((t, l, row))
    cmul(a, B[1], B[0], Z[8], True); cmul(a, B[2], B[0], Z[16], True); cmul(a, B[3], B[1], Z[16], True)
    for b in range(4): cmul(a, B[4+b], B[b], Z[32], True)
    for b in range(8): cmul(a, B[8+b], B[b], Z[64], True)
    for b in range(16): split_write(B[b], b)
    cmul(a, Z[3], Z[1], Z[2]); split_flush(); cmul(a, Z[5], Z[1], Z[4]); cmul(a, Z[6], Z[2], Z[4]); cmul(a, Z[384], Z[256], Z[128])
    cmul(a, Z[7], Z[3], Z[4]); cmul(a, Z[640], Z[512], Z[128]); cmul(a, Z[768], Z[512], Z[256]); cmul(a, Z[896], Z[512], Z[384])
    AV = B
    def gen_tile(T):
        rows = []
        def prod(i, x, y):
            cmul(a, AV[i], Z[x], Z[y]); rows.append((i, AV[i]))
        if T == 0:
            a(f"v_mov_b32 v{AV[0]}, 1.0\nv_mov_b32 v{AV[0]+1}, 0"); rows.append((0, AV[0]))
            for e in range(1, 8): rows.append((e, Z[e]))
            rows.append((8, Z[128]))
            for e in range(1, 8): prod(8+e, 128, e)
        elif T == 1:
            for ai, base in enumerate((256, 384)):
                rows.append((4*ai, Z[base]))
                for e in range(1, 4): prod(4*ai+e, base, 2*e)
            for ai, base in enumerate((512, 640, 768, 896)):
                rows.append((8+2*ai, Z[base])); prod(9+2*ai, base, 4)
        else:
            rows.append((0, Z[1024]))
            for ai in range(1, 8): prod(ai, 1024, 128*ai)
            rows.append((8, Z[2048]))
        return rows
    BF = 116; ACC = 156; AFR = [8, 16, 64, 148]
    rows = gen_tile(0)
    a("s_waitcnt lgkmcnt(0)")
    for s in range(4):
        a(f"ds_read_b128 v[{BF+8*s}:{BF+8*s+3}], v6 offset:{64*s}\nds_read_b128 v[{BF+8*s+4}:{BF+8*s+7}], v6 offset:{64*s+256}")
    a("s_waitcnt lgkmcnt(0)")
    for T in range(3):
        for (r, x) in rows: split_write(x, r)
        if T < 2: rows = gen_tile(T+1)
        split_flush()
        a("s_waitcnt lgkmcnt(0)")
        for s in range(4):
            f = AFR[s]
            a(f"ds_read_b128 v[{f}:{f+3}], v6 offset:{64*s}\nds_read_b128 v[{f+4}:{f+7}], v6 offset:{64*s+256}")
        c = ACC + 4*T
        for s in range(4):
            f = AFR[s]; b = BF + 8*s
            a(f"s_waitcnt lgkmcnt({6-2*s})")
            c0 = "0" if s == 0 else f"v[{c}:{c+3}]"
            a(f"""v_mfma_f32_16x16x32_bf16 v[{c}:{c+3}], v[{f}:{f+3}], v[{b}:{b+3}], {c0}
v_mfma_f32_16x16x32_bf16 v[{c}:{c+3}], v[{f+4}:{f+7}], v[{b}:{b+3}], v[{c}:{c+3}]
v_mfma_f32_16x16x32_bf16 v[{c}:{c+3}], v[{f}:{f+3}], v[{b+4}:{b+7}], v[{c}:{c+3}]""")
    a.stamp()
    a(f"""s_lshl_b32 s20, s2, 13
s_lshr_b32 s21, s2, 2
s_lshl_b32 s21, s21, 15
s_add_u32 s8, s4, s21
s_addc_u32 s9, s5, 0
s_add_u32 s8, s8, {WS_XNT}
s_addc_u32 s9, s9, 0
s_mov_b32 s10, 32768
s_mov_b32 s11, 0x00020000
s_and_b32 s21, s2, 3
s_lshl_b32 s21, s21, 2
s_add_u32 s16, s4, s20
s_addc_u32 s17, s5, 0
s_add_u32 s16, s16, {WS_YYT}
s_addc_u32 s17, s17, 0
s_mov_b32 s18, 8192
s_mov_b32 s19, 0x00020000
s_add_u32 s36, s4, {WS_MODP}
s_addc_u32 s37, s5, 0
s_mov_b32 s38, {4*2688*4}
s_mov_b32 s39, 0x00020000
s_add_u32 s40, s4, {WS_MOD}
s_addc_u32 s41, s5, 0
s_mov_b32 s42, 5376
s_mov_b32 s43, 0x00020000
v_bfrev_b32 v4, 1
v_lshl_add_u32 v40, v0, 4, s21
v_lshrrev_b32 v44, 1, v1
v_and_b32 v45, 1, v1
v_mul_u32_u24 v13, 448, v44
v_add_u32 v13, v13, v45
s_lshl_b32 s23, s2, 1
v_add_u32 v13, s23, v13
v_lshlrev_b32 v14, 2, v13
v_cmp_gt_u32 vcc, 12, v1
v_cndmask_b32 v14, v4, v14, vcc
v_lshlrev_b32 v13, 1, v13
v_cmp_gt_u32 vcc, 12, v0
v_cndmask_b32 v13, v4, v13, vcc""")
    a(f"""v_and_b32 v5, 255, v0
v_lshrrev_b32 v6, 8, v0
v_mul_u32_u24 v7, 2624, v6
v_add_u32 v7, {KCL}, v7
v_lshlrev_b32 v8, 3, v5""")
    for e in range(0, 8, 2):
        a(f"""v_add_u32 v9, {e}, v8
v_add_u32 v10, {e+1}, v8
v_cvt_f32_u32 v11, v9
v_cvt_f32_u32 v12, v10
v_cvt_pk_bf16_f32 v11, v11, v12
v_lshrrev_b32 v12, 16, v11
v_and_b32 v11, 0xffff, v11
v_subrev_u32 v11, 17024, v11
v_subrev_u32 v12, 17024, v12
v_cmp_gt_u32 vcc, 128, v8
v_cndmask_b32 v11, v11, v9, vcc
v_cndmask_b32 v12, v12, v10, vcc
v_lshl_add_u32 v{80+e}, v11, 2, v7
v_lshl_add_u32 v{81+e}, v12, 2, v7""")
    a(f"""v_lshrrev_b32 v88, 6, v0
v_and_b32 v89, 3, v88
v_lshrrev_b32 v90, 4, v1
v_and_b32 v91, 7, v1
v_bfe_u32 v92, v1, 3, 1
v_sub_u32 v96, 7, v91
v_mul_u32_u24 v96, {UCS}, v96
v_mul_u32_u24 v93, {UCD}, v6
v_add_u32 v96, v96, v93
v_lshl_add_u32 v96, v90, 4, v96
v_lshlrev_b32 v93, 8, v92
v_sub_u32 v96, v96, v93
v_lshl_add_u32 v96, v89, 7, v96
v_and_b32 v94, 15, v1
v_add_u32 v95, v94, v90
v_mul_u32_u24 v97, {KHD}, v6
v_lshl_add_u32 v97, v95, 4, v97
v_lshl_add_u32 v97, v89, 7, v97
v_lshlrev_b32 v98, 15, v6
v_lshl_add_u32 v98, v89, 13, v98
v_lshl_add_u32 v98, v94, 5, v98
v_lshrrev_b32 v93, 1, v90
v_lshl_add_u32 v98, v93, 9, v98
v_and_b32 v93, 1, v90
v_add_u32 v148, 256, v96
v_add_u32 v149, {KH}, v97
v_lshl_add_u32 v150, v93, 4, v98""")
    a(f"""v_lshlrev_b32 v10, 4, v1
v_add_u32 v10, s60, v10
ds_write_b128 v10, v[{ACC}:{ACC+3}]
ds_write_b128 v10, v[{ACC+4}:{ACC+7}] offset:1024
ds_write_b128 v10, v[{ACC+8}:{ACC+11}] offset:2048
s_waitcnt lgkmcnt(0)
s_barrier""")
    a.stamp()
    a(f"""s_and_b32 s61, s3, 3
s_cmp_lg_u32 s61, 3
s_cbranch_scc1 KA_red
s_cmp_lg_u32 s3, 3
s_cbranch_scc1 KA_bar2
s_add_u32 s44, s4, {WS_GO}
s_addc_u32 s45, s5, 0
s_mov_b32 s46, 8192
s_mov_b32 s47, 0x00020000
v_mov_b32 v11, {PT+208}
ds_read_b128 v[48:51], v11
s_and_b32 s29, s90, 31
s_lshl_b32 s29, s29, 8
v_cmp_eq_u32 vcc, 0, v1
v_cndmask_b32 v56, v4, 0, vcc
s_mov_b32 s28, 0
s_mov_b64 exec, 1
s_waitcnt lgkmcnt(0)
KA_poll2:
buffer_load_dwordx4 v[52:55], v56, s[44:47], s29 offen sc1
s_add_u32 s28, s28, 1
s_waitcnt vmcnt(0)
v_cmp_eq_u32 s[30:31], v48, v52
v_cmp_eq_u32 s[32:33], v49, v53
v_cmp_eq_u32 s[34:35], v50, v54
v_cmp_eq_u32 vcc, v51, v55
s_or_b64 s[30:31], s[30:31], s[32:33]
s_or_b64 s[34:35], s[34:35], vcc
s_or_b64 s[30:31], s[30:31], s[34:35]
s_cbranch_scc0 KA_pdone
s_cmp_ge_u32 s28, {2*SPIN_MAX}
s_cbranch_scc1 KA_pdone
s_sleep 2
s_branch KA_poll2
KA_pdone:
s_mov_b64 exec, -1
s_branch KA_bar2
KA_red:
s_lshr_b32 s57, s3, 2
s_mul_i32 s56, s57, {4*REG}
s_lshl_b32 s58, s61, 10
s_add_u32 s56, s56, s58
v_lshlrev_b32 v10, 4, v1
v_add_u32 v10, s56, v10
ds_read_b128 v[48:51], v10
ds_read_b128 v[52:55], v10 offset:{REG}
ds_read_b128 v[56:59], v10 offset:{2*REG}
ds_read_b128 v[60:63], v10 offset:{3*REG}
s_lshl_b32 s56, s61, 6
s_add_u32 s56, s56, {PT}
v_lshlrev_b32 v11, 4, v3
v_add_u32 v11, s56, v11
ds_read_b128 v[64:67], v11
s_mul_i32 s56, s57, 2624
s_add_u32 s56, s56, {KCL}
v_lshlrev_b32 v12, 3, v2
s_cmp_eq_u32 s61, 2
s_cselect_b64 s[54:55], -1, 0
v_mov_b32 v76, {PT+192}
s_waitcnt lgkmcnt(0)""")
    for r in range(4):
        a(f"""v_add_f32 v{48+r}, v{48+r}, v{52+r}
v_add_f32 v{56+r}, v{56+r}, v{60+r}
v_add_f32 v{48+r}, v{48+r}, v{56+r}
v_add_u32 v{68+r}, v{64+r}, v12
v_cvt_f32_u32 v{72+r}, v{68+r}
v_lshrrev_b32 v{72+r}, 16, v{72+r}
v_subrev_u32 v{72+r}, 17024, v{72+r}
v_cmp_gt_u32 vcc, 128, v{68+r}
v_cndmask_b32 v{72+r}, v{72+r}, v{68+r}, vcc
v_lshl_add_u32 v{72+r}, v{72+r}, 2, s56
v_cmp_lt_u32 vcc, 2048, v{68+r}
v_cndmask_b32 v{72+r}, v{72+r}, v76, vcc
v_cmp_eq_u32 vcc, 0, v{64+r}
s_and_b64 vcc, vcc, s[54:55]
v_cndmask_b32 v{72+r}, v{72+r}, v76, vcc
ds_write_b32 v{72+r}, v{48+r}""")
    a("KA_bar2:")
    a("s_waitcnt lgkmcnt(0)\ns_barrier")
    a.stamp()
    a(f"""buffer_load_dword v16, v40, s[8:11], 0 offen sc1
s_movk_i32 s23, 8192
buffer_load_dword v17, v40, s[8:11], s23 offen sc1
s_movk_i32 s23, 16384
buffer_load_dword v18, v40, s[8:11], s23 offen sc1
s_movk_i32 s23, 24576
buffer_load_dword v19, v40, s[8:11], s23 offen sc1
buffer_load_dword v152, v14, s[36:39], 0 offen sc1
s_movk_i32 s23, {2688*4}
buffer_load_dword v153, v14, s[36:39], s23 offen sc1
s_movk_i32 s23, {2*2688*4}
buffer_load_dword v154, v14, s[36:39], s23 offen sc1
s_mov_b32 s23, {3*2688*4}
buffer_load_dword v155, v14, s[36:39], s23 offen sc1""")
    for e in range(8): a(f"ds_read_b32 v{28+e}, v{80+e}")
    a(f"""v_mov_b32 v36, 0
v_mov_b32 v37, 0
v_mov_b32 v38, 0
v_mov_b32 v39, 0
v_lshrrev_b32 v9, 4, v0
v_mul_u32_u24 v9, {UCS}, v9
v_and_b32 v10, 15, v0
v_lshl_add_u32 v9, v10, 4, v9
v_cmp_gt_u32 vcc, 256, v0
s_and_saveexec_b64 s[32:33], vcc
ds_write_b128 v9, v[36:39] offset:4096
s_mov_b64 exec, s[32:33]
v_mul_u32_u24 v9, {KHD}, v6
v_lshl_add_u32 v9, v5, 4, v9
v_add_u32 v9, {KH}, v9
v_cmp_gt_u32 vcc, 15, v5
s_and_saveexec_b64 s[32:33], vcc
ds_write_b128 v9, v[36:39]
ds_write_b128 v9, v[36:39] offset:4352
s_mov_b64 exec, s[32:33]
s_waitcnt lgkmcnt(0)""")
    for k in range(4):
        e = 28 + 2*k
        a(f"""v_cvt_pk_bf16_f32 v{112+k}, v{e}, v{e+1}
v_lshlrev_b32 v120, 16, v{112+k}
v_and_b32 v121, 0xffff0000, v{112+k}
v_sub_f32 v{e}, v{e}, v120
v_sub_f32 v{e+1}, v{e+1}, v121
v_cvt_pk_bf16_f32 v{116+k}, v{e}, v{e+1}""")
    a(f"""ds_write_b128 v9, v[112:115] offset:240
ds_write_b128 v9, v[116:119] offset:{4352+240}
s_waitcnt vmcnt(0)
v_add_f32 v152, v152, v153
v_add_f32 v154, v154, v155
v_add_f32 v152, v152, v154
v_cvt_pk_bf16_f32 v152, v152, v152
buffer_store_short v152, v13, s[40:43], 0 offen
v_and_b32 v152, 0xffff0000, v152
v_readlane_b32 s28, v152, 0
v_readlane_b32 s31, v152, 1
v_readlane_b32 s29, v152, 2
v_readlane_b32 s34, v152, 3
v_mov_b32 v42, s28
v_mov_b32 v43, s31
v_add_f32 v40, 1.0, s29
v_add_f32 v41, 1.0, s34
v_cvt_pk_bf16_f32 v40, v40, v41
v_and_b32 v41, 0xffff0000, v40
v_lshlrev_b32 v40, 16, v40
s_lshl_b32 s31, s59, 16
s_and_b32 s30, s59, 0xffff0000
v_mov_b32 v48, s31
v_mov_b32 v49, s30""")
    a.stamp()
    a("v_lshlrev_b32 v9, 1, v0\nv_sub_u32 v9, 1022, v9")
    for k in range(4):
        src = 16 + k; e = 52 + 2*k
        a(f"""v_lshlrev_b32 v{e}, 16, v{src}
v_and_b32 v{e+1}, 0xffff0000, v{src}
v_mul_f32 v{e}, v{e}, v40
v_mul_f32 v{e+1}, v{e+1}, v41
v_cvt_pk_bf16_f32 v{e}, v{e}, v{e+1}
v_and_b32 v{e+1}, 0xffff0000, v{e}
v_lshlrev_b32 v{e}, 16, v{e}
v_add_f32 v{e}, v{e}, v42
v_add_f32 v{e+1}, v{e+1}, v43
v_cvt_pk_bf16_f32 v{e}, v{e}, v{e+1}
ds_write_b16 v9, v{e} offset:{3072-1024*k}
ds_write_b16_d16_hi v9, v{e} offset:{3072-1024*k+UCD}""")
    a(f"""v_lshlrev_b32 v10, 3, v0
v_sub_u32 v10, 4088, v10
v_and_b32 v9, 1, v0
v_sub_u32 v9, 1, v9
v_mul_u32_u24 v9, {4*UCS}, v9
v_lshrrev_b32 v11, 1, v0
v_sub_u32 v11, 255, v11
v_lshl_add_u32 v9, v11, 4, v9
s_waitcnt lgkmcnt(0)
s_barrier""")
    for d in range(2):
        E = 52 + 8*d
        for k in range(3):
            a(f"ds_read_b64 v[{E+2*k}:{E+2*k+1}], v10 offset:{8*k + d*UCD}")
    W = 80
    for d in range(2):
        E = 52 + 8*d; q = W + 16*d
        a(f"s_waitcnt lgkmcnt({3-3*d})")
        for k in range(4): a(f"v_alignbit_b32 v{q+4+k}, v{E+k+1}, v{E+k}, 16")
        for k in range(4): a(f"v_mov_b32 v{q+8+k}, v{E+k+1}")
        for k in range(4): a(f"v_alignbit_b32 v{q+12+k}, v{E+k+2}, v{E+k+1}, 16")
    for d in range(2):
        E = 52 + 8*d; q = W + 16*d
        a(f"ds_write_b128 v9, v[{E}:{E+3}] offset:{d*UCD}")
        for sg in range(1, 4):
            a(f"ds_write_b128 v9, v[{q+4*sg}:{q+4*sg+3}] offset:{sg*UCS + d*UCD}")
    a("v_mov_b32 v160, v52\nv_mov_b32 v161, v53\nv_mov_b32 v162, v60\nv_mov_b32 v163, v61\nv_mov_b32 v164, v48\nv_mov_b32 v165, v49")
    def emit_hd():
        for k in range(4):
            m = 3 - k; o = 152 + 2*k
            for d in range(2):
                src = 160 + 2*d + (m >> 1)
                if m & 1: a(f"v_and_b32 v{o+d}, 0xffff0000, v{src}")
                else: a(f"v_lshlrev_b32 v{o+d}, 16, v{src}")
            a(f"""v_mul_f32 v{o}, v{o}, v164
v_mul_f32 v{o+1}, v{o+1}, v165
v_cvt_pk_bf16_f32 v{o}, v{o}, v{o+1}
v_and_b32 v{o+1}, 0xffff0000, v{o}
v_lshlrev_b32 v{o}, 16, v{o}""")
    a("s_waitcnt lgkmcnt(0)\ns_barrier")
    a.stamp()
    ACC = 112
    dq = DSQ(a)
    AF = (16, 48); BFc = 80
    def rdA(e, b1):
        r = AF[e] + 4*b1
        dq.issue(f"ds_read_b128 v[{r}:{r+3}], v148 offset:{64*e + 512*(7-b1)}", ("A", e, b1))
    def rdB(e, k1):
        r = BFc + 8*((e*8+k1) % 3)
        dq.issue(f"ds_read_b128 v[{r}:{r+3}], v149 offset:{64*e + 512*k1}", ("Bh", e, k1))
        dq.issue(f"ds_read_b128 v[{r+4}:{r+7}], v149 offset:{64*e + 512*k1 + 4352}", ("Bl", e, k1))
    rdB(0, 0)
    for b1 in range(8): rdA(0, b1)
    rdB(0, 1)
    seq = [(e, k1) for e in range(2) for k1 in range(8)]
    for si, (e, k1) in enumerate(seq):
        r = BFc + 8*(si % 3)
        if si + 2 < len(seq): rdB(*seq[si+2])
        if e == 0: rdA(1, k1)
        dq.wait(("Bl", e, k1))
        for b1 in range(8 - k1):
            dq.wait(("A", e, b1))
            t = k1 + b1; c = ACC + 4*t; ar = AF[e] + 4*b1
            c0 = "0" if (e == 0 and k1 == 0) else f"v[{c}:{c+3}]"
            a(f"v_mfma_f32_16x16x32_bf16 v[{c}:{c+3}], v[{ar}:{ar+3}], v[{r}:{r+3}], {c0}")
            a(f"v_mfma_f32_16x16x32_bf16 v[{c}:{c+3}], v[{ar}:{ar+3}], v[{r+4}:{r+7}], v[{c}:{c+3}]")
        if si == 1: emit_hd()
    a.stamp()
    a("s_waitcnt lgkmcnt(0)\ns_barrier")
    for t in range(8):
        a(f"ds_write_b128 v150, v[{ACC+4*t}:{ACC+4*t+3}] offset:{1024*t}")
    a("v_lshlrev_b32 v1, 4, v0\ns_waitcnt lgkmcnt(0)\ns_barrier")
    for d in range(2):
        for q in range(4):
            r = 16 + 16*d + 4*q
            a(f"ds_read_b128 v[{r}:{r+3}], v1 offset:{32768*d + 8192*q}")
    a("s_waitcnt lgkmcnt(0)")
    for d in range(2):
        for k in range(4):
            r = 16 + 16*d + k
            a(f"v_add_f32 v{r}, v{r}, v{r+4}\nv_add_f32 v{r+8}, v{r+8}, v{r+12}\nv_add_f32 v{r}, v{r}, v{r+8}")
    for k in range(4):
        o = 152 + 2*k
        a(f"""v_cvt_pk_bf16_f32 v50, v{16+k}, v{32+k}
v_and_b32 v51, 0xffff0000, v50
v_lshlrev_b32 v50, 16, v50
v_add_f32 v50, v50, v{o}
v_add_f32 v51, v51, v{o+1}
v_cvt_pk_bf16_f32 v{52+k}, v50, v51""")
    a("buffer_store_dwordx4 v[52:55], v1, s[16:19], 0 offen\ns_mov_b32 s2, s90")
    a.stamp(); a.dump_stamps(0); a.nst = 1
    a("s_branch KA_end")
    a(f"""KA_ln:
s_setprio 3
s_load_dwordx2 s[6:7], s[0:1], {KA['x']}
s_lshl_b32 s8, s2, 3
v_lshrrev_b32 v7, 3, v1
v_add_u32 v7, s8, v7
v_and_b32 v2, 7, v1
s_movk_i32 s9, 896
v_mul_lo_u32 v3, v7, s9
v_lshl_add_u32 v3, v2, 4, v3
s_waitcnt lgkmcnt(0)""")
    srd(a, 12, 6, XSZ)
    srd(a, 16, 4, XSZ, WS_XNT)
    srd(a, 24, 62, 256)
    srd(a, 44, 4, 8192, WS_GO)
    a("""s_and_b32 s29, s2, 3
s_lshl_b32 s29, s29, 2
v_lshl_add_u32 v121, v1, 8, s29
buffer_load_dword v120, v121, s[44:47], 0 offen sc1
s_and_b32 s29, s2, 31
s_lshl_b32 s29, s29, 8
v_mov_b32 v122, s29
buffer_load_dwordx4 v[124:127], v122, s[44:47], 0 offen sc1""")
    for m in range(7):
        a(f"buffer_load_dwordx4 v[{8+4*m}:{11+4*m}], v3, s[12:15], 0 offen offset:{128*m}")
    a(f"""s_mov_b32 s20, {f2u(1.0/448)}
s_mov_b32 s21, {f2u(1e-5)}
v_lshlrev_b32 v4, 15, v2
v_lshl_add_u32 v4, v7, 4, v4""")
    X = 40
    for m in range(7):
        a(f"s_waitcnt vmcnt({6-m})")
        for q in range(4):
            a(f"v_lshlrev_b32 v{X+8*m+2*q}, 16, v{8+4*m+q}\nv_and_b32 v{X+8*m+2*q+1}, 0xffff0000, v{8+4*m+q}")
    a.stamp()
    ln_stats(a, X, 56, 110, 112, 100, 101, 102, 103, 20, 21)
    a.stamp()
    for m in range(7):
        for q in range(4):
            e = X+8*m+2*q
            a(f"""v_sub_f32 v{e}, v{e}, v110
v_sub_f32 v{e+1}, v{e+1}, v110
v_cvt_pk_bf16_f32 v{e}, v{e}, v{e+1}
v_and_b32 v{e+1}, 0xffff0000, v{e}
v_lshlrev_b32 v{e}, 16, v{e}
v_mul_f32 v{e}, v{e}, v112
v_mul_f32 v{e+1}, v{e+1}, v112
v_cvt_pk_bf16_f32 v{8+4*m+q}, v{e}, v{e+1}""")
        a(f"s_mov_b32 s22, {m*262144}\nbuffer_store_dwordx4 v[{8+4*m}:{11+4*m}], v4, s[16:19], s22 offen sc1")
    a(f"""s_waitcnt vmcnt(0)
s_cmp_lt_u32 s2, 224
s_cbranch_scc1 KA_sig
s_barrier
KA_sig:
s_and_b32 s29, s2, 3
s_lshl_b32 s29, s29, 6
v_mov_b32 v8, 1
v_cmp_eq_u32 vcc, 0, v1
v_bfrev_b32 v10, 1
v_cndmask_b32 v9, v10, 0, vcc
buffer_atomic_add v8, v9, s[24:27], s29 offen sc0
s_waitcnt vmcnt(0)
v_readfirstlane_b32 s30, v8
s_cmp_lg_u32 s30, 105
s_cbranch_scc1 KA_notlast
v_not_b32 v12, v120
buffer_store_dword v12, v121, s[44:47], 0 offen sc1
KA_notlast:""")
    a.stamp()
    a(f"""v_mov_b32 v11, {PT+208}
ds_write_b128 v11, v[124:127]
s_waitcnt lgkmcnt(0)""")
    if asmgen.STAMPS:
        a("v_mov_b32 v0, v1\ns_add_u32 s2, s2, 256")
        a.dump_stamps(0)
    a("s_branch KA_end")
    a.nst = 1
    a(f"""KA_rep:
s_cmp_ge_u32 s2, 252
s_cbranch_scc1 KA_end
s_load_dwordx4 s[8:11], s[0:1], {KA['wg']}
s_sub_u32 s12, s2, 224
s_lshl_b32 s12, s12, 3
s_add_u32 s12, s12, s3
s_cmp_ge_u32 s12, 112
s_cselect_b32 s13, 1, 0
s_mul_i32 s14, s13, 112
s_sub_u32 s12, s12, s14
v_lshrrev_b32 v2, 4, v1
v_and_b32 v3, 15, v1
s_lshl_b32 s14, s12, 2
v_add_u32 v2, s14, v2
s_movk_i32 s15, 3584
v_mul_lo_u32 v5, v2, s15
v_lshl_add_u32 v5, v3, 4, v5
v_lshrrev_b32 v6, 1, v3
s_movk_i32 s15, 28672
v_mul_lo_u32 v6, v6, s15
v_lshl_add_u32 v6, v2, 5, v6
v_and_b32 v7, 1, v3
v_lshl_add_u32 v6, v7, 4, v6
s_mul_i32 s15, s13, 14336
v_add_u32 v6, s15, v6
s_waitcnt lgkmcnt(0)
s_cmp_eq_u32 s13, 1
s_cselect_b32 s16, s10, s8
s_cselect_b32 s17, s11, s9
s_mov_b32 s18, {448*3584}
s_mov_b32 s19, 0x00020000""")
    srd(a, 20, 4, 112*28672, WS_WPK)
    a("s_barrier")
    for c in range(14):
        a(f"buffer_load_dwordx4 v[{8+4*c}:{11+4*c}], v5, s[16:19], 0 offen offset:{256*c}")
    for c in range(14):
        a(f"s_mov_b32 s15, {8*28672*c}\ns_waitcnt vmcnt({13})\nbuffer_store_dwordx4 v[{8+4*c}:{11+4*c}], v6, s[20:23], s15 offen sc1")
    a("s_branch KA_end")
    a(f"""KA_mod:
s_cmp_ge_u32 s2, 168
s_cbranch_scc1 KA_end
s_setprio 3
s_load_dwordx4 s[8:11], s[0:1], {KA['c']}
s_mov_b32 s28, s2
s_lshr_b32 s6, s28, 2
s_and_b32 s7, s28, 3
s_mul_i32 s12, s7, {112*5376}
s_lshl_b32 s13, s6, 7
s_add_u32 s12, s12, s13
v_lshrrev_b32 v5, 3, v1
v_and_b32 v2, 7, v1
s_movk_i32 s14, 5376
v_mul_lo_u32 v3, v5, s14
v_lshl_add_u32 v3, v2, 4, v3
v_add_u32 v3, s12, v3
s_mul_i32 s15, s7, 224
v_lshl_add_u32 v4, v5, 1, s15
s_waitcnt lgkmcnt(0)""")
    srd(a, 16, 8, 896)
    srd(a, 20, 10, 448*5376)
    srd(a, 24, 4, 4*2688*4, WS_MODP)
    srd(a, 32, 62, 256)
    srd(a, 44, 4, 8192, WS_GO)
    a("""s_and_b32 s29, s2, 3
s_lshl_b32 s29, s29, 2
v_lshl_add_u32 v121, v1, 8, s29
buffer_load_dword v120, v121, s[44:47], 0 offen sc1
s_and_b32 s29, s2, 31
s_lshl_b32 s29, s29, 8
v_mov_b32 v122, s29
buffer_load_dwordx4 v[124:127], v122, s[44:47], 0 offen sc1""")
    for it in range(14):
        a(f"buffer_load_ushort v{8+it}, v4, s[16:19], 0 offen offset:{16*it}")
    for it in range(14):
        a(f"s_mov_b32 s13, {it*8*5376}\nbuffer_load_dwordx4 v[{24+4*it}:{27+4*it}], v3, s[20:23], s13 offen")
    a(f"s_mov_b32 s14, {LOG2E | 0x80000000}")
    a("s_waitcnt vmcnt(14)")
    for it in range(14):
        a(f"v_lshlrev_b32 v{8+it}, 16, v{8+it}\nv_mul_f32 v{80+it}, s14, v{8+it}")
    for it in range(14): a(f"v_exp_f32 v{80+it}, v{80+it}")
    for it in range(14): a(f"v_add_f32 v{80+it}, 1.0, v{80+it}")
    for it in range(14): a(f"v_rcp_f32 v{80+it}, v{80+it}")
    for it in range(14): a(f"v_mul_f32 v{8+it}, v{8+it}, v{80+it}")
    for it in range(0, 14, 2):
        a(f"v_cvt_pk_bf16_f32 v{8+it}, v{8+it}, v{9+it}\nv_and_b32 v{9+it}, 0xffff0000, v{8+it}\nv_lshlrev_b32 v{8+it}, 16, v{8+it}")
    for it in range(14):
        a(f"s_waitcnt vmcnt({13-it})")
        for q in range(4):
            a(f"v_lshlrev_b32 v96, 16, v{24+4*it+q}\nv_and_b32 v97, 0xffff0000, v{24+4*it+q}")
            if it == 0: a(f"v_mul_f32 v{100+2*q}, v96, v{8+it}\nv_mul_f32 v{101+2*q}, v97, v{8+it}")
            else: a(f"v_fmac_f32 v{100+2*q}, v96, v{8+it}\nv_fmac_f32 v{101+2*q}, v97, v{8+it}")
    a.stamp()
    for q in range(8):
        a(f"v_add_f32 v{100+q}, v{100+q}, v{100+q} row_ror:8 row_mask:0xf bank_mask:0xf")
    for q in range(8): a(f"v_mov_b32 v{110+q}, v{100+q}")
    for q in range(8): a(f"v_permlane32_swap_b32 v{100+q}, v{110+q}")
    for q in range(8): a(f"v_add_f32 v{100+q}, v{100+q}, v{110+q}")
    for q in range(8): a(f"v_mov_b32 v{110+q}, v{100+q}")
    for q in range(8): a(f"v_permlane16_swap_b32 v{100+q}, v{110+q}")
    for q in range(8): a(f"v_add_f32 v{100+q}, v{100+q}, v{110+q}")
    a(f"""s_mul_i32 s12, s7, {2688*4}
s_lshl_b32 s13, s6, 8
s_add_u32 s12, s12, s13
v_lshlrev_b32 v3, 5, v1
v_bfrev_b32 v4, 1
v_cmp_gt_u32 vcc, 8, v1
v_cndmask_b32 v3, v4, v3, vcc
buffer_store_dwordx4 v[100:103], v3, s[24:27], s12 offen sc1
buffer_store_dwordx4 v[104:107], v3, s[24:27], s12 offen offset:16 sc1
s_waitcnt vmcnt(0)""")
    a.stamp()
    if asmgen.STAMPS:
        a("v_mov_b32 v0, v1\ns_add_u32 s2, s28, 512")
        a.dump_stamps(0)
        a("s_mov_b64 exec, -1\ns_mov_b32 s2, s28")
    a(f"""s_and_b32 s29, s2, 3
s_lshl_b32 s29, s29, 6
v_mov_b32 v8, 1
v_cmp_eq_u32 vcc, 0, v1
v_bfrev_b32 v10, 1
v_cndmask_b32 v9, v10, 0, vcc
buffer_atomic_add v8, v9, s[32:35], s29 offen sc0
s_waitcnt vmcnt(0)
v_readfirstlane_b32 s30, v8
s_cmp_lg_u32 s30, 105
s_cbranch_scc1 KA_end
v_not_b32 v12, v120
buffer_store_dword v12, v121, s[44:47], 0 offen sc1
KA_end:
s_endpgm""")
    return a.finalize(), 168
```

```python
from gen import *

def unpack(a, lo, hi, src):
    a(f"v_lshlrev_b32 v{lo}, 16, v{src}\nv_and_b32 v{hi}, 0xffff0000, v{src}")
def rnd_pair(a, e):
    a(f"v_cvt_pk_bf16_f32 v{e}, v{e}, v{e+1}\nv_and_b32 v{e+1}, 0xffff0000, v{e}\nv_lshlrev_b32 v{e}, 16, v{e}")

def gen_k3():
    a = Asm()
    a.stamp()
    a(f"""s_cmp_ge_u32 s2, 256
s_cbranch_scc1 K3_end
s_and_b32 s56, s2, 7
s_lshr_b32 s57, s2, 5
s_lshl_b32 s57, s57, 3
s_add_u32 s56, s56, s57
s_lshl_b32 s56, s56, 2
s_bfe_u32 s57, s2, 0x20003
s_add_u32 s2, s56, s57
s_load_dwordx2 s[4:5], s[0:1], {KA['ws']}
s_load_dwordx2 s[6:7], s[0:1], {KA['x']}
s_load_dwordx2 s[8:9], s[0:1], {KA['wr']}
s_load_dwordx2 s[10:11], s[0:1], {KA['out']}
v_and_b32 v1, 7, v0
v_bfe_u32 v2, v0, 3, 3
v_lshrrev_b32 v3, 6, v0
v_lshl_add_u32 v4, v3, 3, v1
s_lshl_b32 s12, s2, 3
v_add_u32 v5, s12, v2
s_movk_i32 s13, 896
v_mul_lo_u32 v6, v5, s13
v_lshl_add_u32 v6, v4, 4, v6
v_lshlrev_b32 v7, 15, v4
v_lshl_add_u32 v7, v5, 2, v7
v_lshlrev_b32 v8, 4, v4
s_waitcnt lgkmcnt(0)""")
    srd(a, 16, 6, XSZ)
    srd(a, 20, 4, XSZ, WS_YYT)
    srd(a, 24, 4, 5376, WS_MOD)
    srd(a, 28, 8, 896)
    srd(a, 32, 10, XSZ)
    srd(a, 36, 4, XSZ, WS_X1)
    srd(a, 40, 4, 0x6000, WS_R)
    a("buffer_load_dwordx4 v[12:15], v6, s[16:19], 0 offen")
    for q in range(4):
        a(f"s_mov_b32 s14, {8192*q}\nbuffer_load_dword v{16+q}, v7, s[20:23], s14 offen")
    a(f"""buffer_load_dwordx4 v[20:23], v8, s[24:27], 0 offen offset:1792
buffer_load_dwordx4 v[24:27], v8, s[24:27], 0 offen offset:3584
buffer_load_dwordx4 v[28:31], v8, s[24:27], 0 offen offset:2688
s_movk_i32 s14, 4480
buffer_load_dwordx4 v[32:35], v8, s[24:27], s14 offen
buffer_load_dwordx4 v[36:39], v8, s[28:31], 0 offen
s_mov_b32 s44, {f2u(1.0/64)}
s_mov_b32 s45, {f2u(1.0/7)}
s_mov_b32 s46, {f2u(64.0)}
s_mov_b32 s47, {f2u(1.0/448)}
s_mov_b32 s48, {f2u(1e-5)}
v_lshlrev_b32 v9, 6, v2
v_lshl_add_u32 v10, v3, 3, v9
s_waitcnt vmcnt(4)""")
    a.stamp()
    X = 40
    for q in range(4):
        e = X + 2*q
        unpack(a, e, e+1, 16+q)
        unpack(a, 60, 61, 20+q)
        a(f"v_pk_mul_f32 v[{e}:{e+1}], v[{e}:{e+1}], v[60:61]")
        rnd_pair(a, e)
        unpack(a, 60, 61, 12+q)
        a(f"v_pk_add_f32 v[{e}:{e+1}], v[{e}:{e+1}], v[60:61]")
        a(f"v_cvt_pk_bf16_f32 v{48+q}, v{e}, v{e+1}")
        unpack(a, e, e+1, 48+q)
    a("buffer_store_dwordx4 v[48:51], v6, s[36:39], 0 offen")
    a(f"""v_add_f32 v52, v40, v41
v_add_f32 v53, v42, v43
v_add_f32 v54, v44, v45
v_add_f32 v55, v46, v47
v_add_f32 v52, v52, v53
v_add_f32 v54, v54, v55
v_add_f32 v52, v52, v54""")
    sum8lanes(a, 52, 53)
    a("v_mul_f32 v52, s44, v52")
    a("v_sub_f32 v54, v40, v52\nv_mul_f32 v53, v54, v54")
    for i in range(1, 8):
        a(f"v_sub_f32 v54, v{40+i}, v52\nv_fmac_f32 v53, v54, v54")
    sum8lanes(a, 53, 54)
    a(f"""ds_write_b64 v10, v[52:53]
s_waitcnt lgkmcnt(0)
s_barrier
ds_read_b128 v[64:67], v9
ds_read_b128 v[68:71], v9 offset:16
ds_read_b128 v[72:75], v9 offset:32
ds_read_b64 v[76:77], v9 offset:48""")
    a.stamp()
    a("s_waitcnt vmcnt(1)")
    for q in range(4):
        e = 80 + 2*q
        unpack(a, e, e+1, 24+q)
        a(f"v_pk_add_f32 v[{e}:{e+1}], v[{e}:{e+1}], 1.0 op_sel_hi:[1,0]")
        rnd_pair(a, e)
        unpack(a, 88+2*q, 89+2*q, 28+q)
    a(f"""s_waitcnt lgkmcnt(0)
v_add_f32 v52, v64, v66
v_add_f32 v53, v68, v70
v_add_f32 v54, v72, v74
v_add_f32 v52, v52, v76
v_add_f32 v52, v52, v53
v_add_f32 v52, v52, v54
v_mul_f32 v52, s45, v52
v_add_f32 v53, v65, v67
v_add_f32 v54, v69, v71
v_add_f32 v55, v73, v75
v_add_f32 v53, v53, v77
v_add_f32 v53, v53, v54
v_add_f32 v53, v53, v55
v_sub_f32 v55, v64, v52
v_mul_f32 v54, v55, v55""")
    for i in range(1, 7):
        a(f"v_sub_f32 v55, v{64+2*i}, v52\nv_fmac_f32 v54, v55, v55")
    a("v_fmac_f32 v53, s46, v54\nv_mul_f32 v53, s47, v53")
    bf16r(a, 56, 52)
    bf16r(a, 53, 53)
    a("v_add_f32 v53, s48, v53")
    bf16r(a, 53, 53)
    a("v_sqrt_f32 v53, v53")
    bf16r(a, 53, 53)
    a("v_rcp_f32 v57, v53\nv_mov_b32 v58, v56\nv_mov_b32 v59, v57")
    a("v_mov_b32 v100, v56\nv_mov_b32 v101, v56\nv_mov_b32 v102, v57\nv_mov_b32 v103, v57")
    for q in range(4):
        e = 104 + 2*q; x = X + 2*q
        a(f"v_pk_add_f32 v[{e}:{e+1}], v[{x}:{x+1}], v[100:101] neg_lo:[0,1] neg_hi:[0,1]")
        rnd_pair(a, e)
        a(f"v_pk_mul_f32 v[{e}:{e+1}], v[{e}:{e+1}], v[102:103]")
        rnd_pair(a, e)
        a(f"v_pk_mul_f32 v[{e}:{e+1}], v[{e}:{e+1}], v[{80+2*q}:{81+2*q}]")
        rnd_pair(a, e)
        a(f"v_pk_add_f32 v[{e}:{e+1}], v[{e}:{e+1}], v[{88+2*q}:{89+2*q}]")
        rnd_pair(a, e)
        unpack(a, 60, 61, 36+q)
        if q == 0: a(f"v_mul_f32 v62, v{e}, v60\nv_mul_f32 v63, v{e+1}, v61")
        else: a(f"v_fmac_f32 v62, v{e}, v60\nv_fmac_f32 v63, v{e+1}, v61")
        unpack(a, 60, 61, 32+q)
        a(f"v_pk_mul_f32 v[60:61], v[60:61], v[{e}:{e+1}]")
        rnd_pair(a, 60)
        a(f"v_pk_add_f32 v[60:61], v[60:61], v[{x}:{x+1}]")
        a(f"v_cvt_pk_bf16_f32 v{112+q}, v60, v61")
    a("buffer_store_dwordx4 v[112:115], v6, s[32:35], 0 offen")
    a.stamp()
    a("v_add_f32 v62, v62, v63")
    sum8lanes(a, 62, 63)
    a(f"""v_lshlrev_b32 v9, 5, v2
v_lshl_add_u32 v10, v3, 2, v9
ds_write_b32 v10, v62 offset:512
s_waitcnt lgkmcnt(0)
s_barrier
v_cmp_gt_u32 vcc, 64, v0
s_and_saveexec_b64 s[50:51], vcc
s_cbranch_execz K3_end
ds_read_b128 v[64:67], v9 offset:512
ds_read_b96 v[68:70], v9 offset:528
v_cmp_eq_u32 vcc, 0, v1
v_lshlrev_b32 v11, 2, v5
v_lshlrev_b32 v12, 3, v5
v_bfrev_b32 v13, 1
v_cndmask_b32 v11, v13, v11, vcc
v_cndmask_b32 v12, v13, v12, vcc
s_movk_i32 s14, 0x2000
s_waitcnt lgkmcnt(0)
v_add_f32 v64, v64, v65
v_add_f32 v66, v66, v67
v_add_f32 v68, v68, v69
v_add_f32 v64, v64, v66
v_add_f32 v68, v68, v70
v_add_f32 v64, v64, v68""")
    bf16r(a, 64, 64)
    a(f"""v_ashrrev_i32 v65, 31, v64
v_or_b32 v65, 0x80000000, v65
v_xor_b32 v64, v64, v65
v_and_b32 v64, 0xffff0000, v64
v_sub_u32 v65, 2047, v5
v_or_b32 v64, v64, v65
buffer_store_dword v64, v11, s[40:43], 0 offen
buffer_store_dwordx2 v[58:59], v12, s[40:43], s14 offen""")
    a.stamp(); a.dump_stamps(2)
    a("""K3_end:
s_endpgm""")
    return a.finalize(), 116
```

```python
from gen import *
from gen_k1 import cmul, WS_MODP, REG
from gen_k2 import DSQ, UCS, UCD, KH, KHD
import asmgen

KCL = KH + 2*KHD
PT = KCL + 2*2624
K12_LDS = PT + 256
SPIN_MAX = 200000
WS_GO = 0x1E0000
WS_WPK = 0xC00000

def gen_k12():
    a = Asm()
    a.stamp()
    a(f"""s_cmp_ge_u32 s2, 256
s_cbranch_scc1 KA_end
s_load_dwordx16 s[8:23], s[0:1], {KA['are']}
s_load_dwordx2 s[4:5], s[0:1], {KA['ws']}
s_load_dwordx2 s[62:63], s[0:1], {KA['dbg']}
s_load_dwordx2 s[6:7], s[0:1], {KA['x']}
s_load_dwordx4 s[48:51], s[0:1], {KA['c']}
v_lshrrev_b32 v4, 6, v0
v_and_b32 v1, 63, v0
v_readfirstlane_b32 s3, v4
s_cmp_eq_u32 s3, 8
s_cbranch_scc1 KA_ln
s_cmp_eq_u32 s3, 9
s_cbranch_scc1 KA_mod
s_cmp_ge_u32 s2, 224
s_cbranch_scc1 KA_rep""")
    a(f"""s_mov_b32 s90, s2
s_and_b32 s56, s2, 7
s_lshr_b32 s57, s2, 5
s_lshl_b32 s57, s57, 3
s_add_u32 s56, s56, s57
s_lshl_b32 s56, s56, 2
s_bfe_u32 s57, s2, 0x20003
s_add_u32 s2, s56, s57
s_lshl_b32 s56, s2, 10
v_lshlrev_b32 v5, 1, v0
v_add_u32 v5, s56, v5
v_and_b32 v2, 15, v1
v_lshrrev_b32 v3, 4, v1
s_mul_i32 s60, s3, {REG}
s_lshl_b32 s57, s2, 2
s_waitcnt lgkmcnt(0)""")
    for k in range(6):
        srd(a, 24+4*k, 8+2*k, 448*256*2)
    for k in range(6):
        a(f"buffer_load_ushort v{16+k}, v5, s[{24+4*k}:{27+4*k}], 0 offen")
    a(f"""s_add_u32 s20, s20, s57
s_addc_u32 s21, s21, 0
s_load_dword s58, s[20:21], 0
s_add_u32 s22, s22, s57
s_addc_u32 s23, s23, 0
s_load_dword s59, s[22:23], 0
s_mov_b32 m0, s60
s_branch KA_kgb""")
    a(f"""KA_ln:
s_setprio 3
s_waitcnt lgkmcnt(0)
s_lshl_b32 s8, s2, 3
v_lshrrev_b32 v7, 3, v1
v_add_u32 v7, s8, v7
v_and_b32 v2, 7, v1
s_movk_i32 s9, 896
v_mul_lo_u32 v3, v7, s9
v_lshl_add_u32 v3, v2, 4, v3
s_waitcnt lgkmcnt(0)""")
    srd(a, 12, 6, XSZ)
    srd(a, 16, 4, XSZ, WS_XNT)
    srd(a, 24, 62, 256)
    srd(a, 44, 4, 8192, WS_GO)
    a("""s_and_b32 s29, s2, 3
s_lshl_b32 s29, s29, 2
v_lshl_add_u32 v121, v1, 8, s29
buffer_load_dword v120, v121, s[44:47], 0 offen sc1
s_and_b32 s29, s2, 31
s_lshl_b32 s29, s29, 8
v_mov_b32 v122, s29
buffer_load_dwordx4 v[124:127], v122, s[44:47], 0 offen sc1""")
    for m in range(7):
        a(f"buffer_load_dwordx4 v[{8+4*m}:{11+4*m}], v3, s[12:15], 0 offen offset:{128*m}")
    a(f"""s_mov_b32 s20, {f2u(1.0/448)}
s_mov_b32 s21, {f2u(1e-5)}
v_lshlrev_b32 v4, 15, v2
v_lshl_add_u32 v4, v7, 4, v4""")
    a("s_branch KA_lnb")
    a(f"""KA_mod:
s_cmp_ge_u32 s2, 168
s_cbranch_scc1 KA_end
s_setprio 3
s_waitcnt lgkmcnt(0)
s_mov_b32 s28, s2
s_lshr_b32 s36, s28, 2
s_and_b32 s37, s28, 3
s_mul_i32 s12, s37, {112*5376}
s_lshl_b32 s13, s36, 7
s_add_u32 s12, s12, s13
v_lshrrev_b32 v5, 3, v1
v_and_b32 v2, 7, v1
s_movk_i32 s14, 5376
v_mul_lo_u32 v3, v5, s14
v_lshl_add_u32 v3, v2, 4, v3
v_add_u32 v3, s12, v3
s_mul_i32 s15, s37, 224
v_lshl_add_u32 v4, v5, 1, s15
s_waitcnt lgkmcnt(0)""")
    srd(a, 16, 48, 896)
    srd(a, 20, 50, 448*5376)
    srd(a, 24, 4, 4*2688*4, WS_MODP)
    srd(a, 32, 62, 256)
    srd(a, 44, 4, 8192, WS_GO)
    a("""s_and_b32 s29, s2, 3
s_lshl_b32 s29, s29, 2
v_lshl_add_u32 v121, v1, 8, s29
buffer_load_dword v120, v121, s[44:47], 0 offen sc1
s_and_b32 s29, s2, 31
s_lshl_b32 s29, s29, 8
v_mov_b32 v122, s29
buffer_load_dwordx4 v[124:127], v122, s[44:47], 0 offen sc1""")
    for it in range(14):
        a(f"buffer_load_ushort v{8+it}, v4, s[16:19], 0 offen offset:{16*it}")
    for it in range(14):
        a(f"s_mov_b32 s13, {it*8*5376}\nbuffer_load_dwordx4 v[{24+4*it}:{27+4*it}], v3, s[20:23], s13 offen")
    a("s_branch KA_modb")
    a("KA_kgb:")
    a(f"""v_lshrrev_b32 v10, 3, v2
v_and_b32 v11, 7, v2
v_lshl_add_u32 v7, v10, 7, v11
v_lshrrev_b32 v12, 2, v11
v_and_b32 v13, 3, v11
v_lshlrev_b32 v13, 1, v13
v_lshl_add_u32 v12, v12, 7, v13
v_add_u32 v12, 256, v12
v_lshrrev_b32 v13, 1, v11
v_and_b32 v14, 1, v11
v_lshlrev_b32 v14, 2, v14
v_lshl_add_u32 v13, v13, 7, v14
v_add_u32 v13, 512, v13
v_cmp_eq_u32 vcc, 0, v10
v_cndmask_b32 v8, v13, v12, vcc
v_lshlrev_b32 v12, 7, v2
v_add_u32 v12, 1024, v12
v_cmp_ge_u32 vcc, 8, v2
v_cndmask_b32 v9, 0, v12, vcc
v_lshlrev_b32 v10, 2, v2
v_add_u32 v10, {PT}, v10
ds_write_b32 v10, v7
ds_write_b32 v10, v8 offset:64
ds_write_b32 v10, v9 offset:128
v_mul_u32_u24 v6, 544, v2
v_lshl_add_u32 v6, v3, 4, v6
v_add_u32 v6, s60, v6
s_mov_b32 s52, {LOG2E}
s_mov_b32 s53, {INV2PI}
s_mov_b32 s50, 0x0000bf80
s_mov_b32 s51, 0xbf800000
s_lshr_b32 s57, s3, 2
s_lshl_b32 s57, s57, 4
s_waitcnt lgkmcnt(0)
s_lshr_b32 s58, s58, s57
s_lshl_b32 s58, s58, 16
v_mov_b32 v10, s58
v_mul_f32 v10, s52, v10
v_exp_f32 v10, v10""")
    bf16r(a, 10, 10)
    a("s_waitcnt vmcnt(0)")
    a.stamp()
    for k in range(6): a(f"v_lshlrev_b32 v{16+k}, 16, v{16+k}")
    a(f"""v_mul_f32 v16, v10, v16
v_mul_f32 v17, v10, v17
v_mul_f32 v18, v10, v18
v_mul_f32 v19, v10, v19
v_mul_f32 v16, s52, v16
v_mul_f32 v17, s53, v17""")
    Z = {e: 24 + 2*i for i, e in enumerate([1,2,4,8,16,32,64,128,256,512,1024,2048,3,5,6,7,384,640,768,896])}
    dirs = [1, 8, 128, 1024]
    for k, e in enumerate(dirs):
        a(f"v_mul_f32 v{64+k}, {float(e)}, v16\nv_mul_f32 v{68+k}, {float(e)}, v17")
    for k, e in enumerate(dirs):
        a(f"v_exp_f32 v{64+k}, v{64+k}\nv_fract_f32 v{68+k}, v{68+k}")
    for k, e in enumerate(dirs):
        a(f"v_cos_f32 v{Z[e]}, v{68+k}\nv_sin_f32 v{Z[e]+1}, v{68+k}")
    B = [72 + 2*b for b in range(16)]
    cmul(a, B[0], 20, 18)
    a(f"v_xor_b32 v{B[0]+1}, 0x80000000, v{B[0]+1}")
    for k, e in enumerate(dirs):
        a(f"v_mul_f32 v{Z[e]}, v{64+k}, v{Z[e]}\nv_mul_f32 v{Z[e]+1}, v{64+k}, v{Z[e]+1}")
    def sq(e2, e): cmul(a, Z[e2], Z[e], Z[e])
    sq(16, 8); sq(2, 1); sq(256, 128); sq(2048, 1024); sq(32, 16); sq(4, 2); sq(512, 256); sq(64, 32)
    tmpi = [0]
    TH = [104, 105, 106]; TT = [108, 110, 112]; TL = [107, 114, 115]
    pend = []
    def split_flush():
        while pend:
            t, l, row = pend.pop(0)
            a(f"""v_cvt_pk_bf16_f32 v{l}, v{t}, v{t+1}
ds_write_addtid_b32 v{l} offset:{row*544+256}""")
    def split_write(x, row):
        k = tmpi[0] % 3; tmpi[0] += 1
        h, t, l = TH[k], TT[k], TL[k]
        a(f"""v_cvt_pk_bf16_f32 v{h}, v{x}, v{x+1}
v_dot2_f32_bf16 v{t}, v{h}, s50, v{x}
v_dot2_f32_bf16 v{t+1}, v{h}, s51, v{x+1}
ds_write_addtid_b32 v{h} offset:{row*544}""")
        split_flush()
        pend.append((t, l, row))
    cmul(a, B[1], B[0], Z[8], True); cmul(a, B[2], B[0], Z[16], True); cmul(a, B[3], B[1], Z[16], True)
    for b in range(4): cmul(a, B[4+b], B[b], Z[32], True)
    for b in range(8): cmul(a, B[8+b], B[b], Z[64], True)
    for b in range(16): split_write(B[b], b)
    cmul(a, Z[3], Z[1], Z[2]); split_flush(); cmul(a, Z[5], Z[1], Z[4]); cmul(a, Z[6], Z[2], Z[4]); cmul(a, Z[384], Z[256], Z[128])
    cmul(a, Z[7], Z[3], Z[4]); cmul(a, Z[640], Z[512], Z[128]); cmul(a, Z[768], Z[512], Z[256]); cmul(a, Z[896], Z[512], Z[384])
    AV = B
    def gen_tile(T):
        rows = []
        def prod(i, x, y):
            cmul(a, AV[i], Z[x], Z[y]); rows.append((i, AV[i]))
        if T == 0:
            a(f"v_mov_b32 v{AV[0]}, 1.0\nv_mov_b32 v{AV[0]+1}, 0"); rows.append((0, AV[0]))
            for e in range(1, 8): rows.append((e, Z[e]))
            rows.append((8, Z[128]))
            for e in range(1, 8): prod(8+e, 128, e)
        elif T == 1:
            for ai, base in enumerate((256, 384)):
                rows.append((4*ai, Z[base]))
                for e in range(1, 4): prod(4*ai+e, base, 2*e)
            for ai, base in enumerate((512, 640, 768, 896)):
                rows.append((8+2*ai, Z[base])); prod(9+2*ai, base, 4)
        else:
            rows.append((0, Z[1024]))
            for ai in range(1, 8): prod(ai, 1024, 128*ai)
            rows.append((8, Z[2048]))
        return rows
    BF = 116; ACC = 156; AFR = [8, 16, 64, 148]
    rows = gen_tile(0)
    a("s_waitcnt lgkmcnt(0)")
    for s in range(4):
        a(f"ds_read_b128 v[{BF+8*s}:{BF+8*s+3}], v6 offset:{64*s}\nds_read_b128 v[{BF+8*s+4}:{BF+8*s+7}], v6 offset:{64*s+256}")
    a("s_waitcnt lgkmcnt(0)")
    for T in range(3):
        for (r, x) in rows: split_write(x, r)
        if T < 2: rows = gen_tile(T+1)
        split_flush()
        a("s_waitcnt lgkmcnt(0)")
        for s in range(4):
            f = AFR[s]
            a(f"ds_read_b128 v[{f}:{f+3}], v6 offset:{64*s}\nds_read_b128 v[{f+4}:{f+7}], v6 offset:{64*s+256}")
        c = ACC + 4*T
        for s in range(4):
            f = AFR[s]; b = BF + 8*s
            a(f"s_waitcnt lgkmcnt({6-2*s})")
            c0 = "0" if s == 0 else f"v[{c}:{c+3}]"
            a(f"""v_mfma_f32_16x16x32_bf16 v[{c}:{c+3}], v[{f}:{f+3}], v[{b}:{b+3}], {c0}
v_mfma_f32_16x16x32_bf16 v[{c}:{c+3}], v[{f+4}:{f+7}], v[{b}:{b+3}], v[{c}:{c+3}]
v_mfma_f32_16x16x32_bf16 v[{c}:{c+3}], v[{f}:{f+3}], v[{b+4}:{b+7}], v[{c}:{c+3}]""")
    a.stamp()
    a(f"""s_lshl_b32 s20, s2, 13
s_lshr_b32 s21, s2, 2
s_lshl_b32 s21, s21, 15
s_add_u32 s8, s4, s21
s_addc_u32 s9, s5, 0
s_add_u32 s8, s8, {WS_XNT}
s_addc_u32 s9, s9, 0
s_mov_b32 s10, 32768
s_mov_b32 s11, 0x00020000
s_and_b32 s21, s2, 3
s_lshl_b32 s21, s21, 2
s_add_u32 s16, s4, s20
s_addc_u32 s17, s5, 0
s_add_u32 s16, s16, {WS_YYT}
s_addc_u32 s17, s17, 0
s_mov_b32 s18, 8192
s_mov_b32 s19, 0x00020000
s_add_u32 s36, s4, {WS_MODP}
s_addc_u32 s37, s5, 0
s_mov_b32 s38, {4*2688*4}
s_mov_b32 s39, 0x00020000
s_add_u32 s40, s4, {WS_MOD}
s_addc_u32 s41, s5, 0
s_mov_b32 s42, 5376
s_mov_b32 s43, 0x00020000
v_bfrev_b32 v4, 1
v_lshl_add_u32 v40, v0, 4, s21
v_lshrrev_b32 v44, 1, v1
v_and_b32 v45, 1, v1
v_mul_u32_u24 v13, 448, v44
v_add_u32 v13, v13, v45
s_lshl_b32 s23, s2, 1
v_add_u32 v13, s23, v13
v_lshlrev_b32 v14, 2, v13
v_cmp_gt_u32 vcc, 12, v1
v_cndmask_b32 v14, v4, v14, vcc
v_lshlrev_b32 v13, 1, v13
v_cmp_gt_u32 vcc, 12, v0
v_cndmask_b32 v13, v4, v13, vcc""")
    a(f"""v_and_b32 v5, 255, v0
v_lshrrev_b32 v6, 8, v0
v_mul_u32_u24 v7, 2624, v6
v_add_u32 v7, {KCL}, v7
v_lshlrev_b32 v8, 3, v5""")
    for e in range(0, 8, 2):
        a(f"""v_add_u32 v9, {e}, v8
v_add_u32 v10, {e+1}, v8
v_cvt_f32_u32 v11, v9
v_cvt_f32_u32 v12, v10
v_cvt_pk_bf16_f32 v11, v11, v12
v_lshrrev_b32 v12, 16, v11
v_and_b32 v11, 0xffff, v11
v_subrev_u32 v11, 17024, v11
v_subrev_u32 v12, 17024, v12
v_cmp_gt_u32 vcc, 128, v8
v_cndmask_b32 v11, v11, v9, vcc
v_cndmask_b32 v12, v12, v10, vcc
v_lshl_add_u32 v{80+e}, v11, 2, v7
v_lshl_add_u32 v{81+e}, v12, 2, v7""")
    a(f"""v_lshrrev_b32 v88, 6, v0
v_and_b32 v89, 3, v88
v_lshrrev_b32 v90, 4, v1
v_and_b32 v91, 7, v1
v_bfe_u32 v92, v1, 3, 1
v_sub_u32 v96, 7, v91
v_mul_u32_u24 v96, {UCS}, v96
v_mul_u32_u24 v93, {UCD}, v6
v_add_u32 v96, v96, v93
v_lshl_add_u32 v96, v90, 4, v96
v_lshlrev_b32 v93, 8, v92
v_sub_u32 v96, v96, v93
v_lshl_add_u32 v96, v89, 7, v96
v_and_b32 v94, 15, v1
v_add_u32 v95, v94, v90
v_mul_u32_u24 v97, {KHD}, v6
v_lshl_add_u32 v97, v95, 4, v97
v_lshl_add_u32 v97, v89, 7, v97
v_lshlrev_b32 v98, 15, v6
v_lshl_add_u32 v98, v89, 13, v98
v_lshl_add_u32 v98, v94, 5, v98
v_lshrrev_b32 v93, 1, v90
v_lshl_add_u32 v98, v93, 9, v98
v_and_b32 v93, 1, v90
v_add_u32 v148, 256, v96
v_add_u32 v149, {KH}, v97
v_lshl_add_u32 v150, v93, 4, v98""")
    a(f"""v_lshlrev_b32 v10, 4, v1
v_add_u32 v10, s60, v10
ds_write_b128 v10, v[{ACC}:{ACC+3}]
ds_write_b128 v10, v[{ACC+4}:{ACC+7}] offset:1024
ds_write_b128 v10, v[{ACC+8}:{ACC+11}] offset:2048
s_waitcnt lgkmcnt(0)
s_barrier""")
    a.stamp()
    a(f"""s_and_b32 s61, s3, 3
s_cmp_lg_u32 s61, 3
s_cbranch_scc1 KA_red
s_cmp_lg_u32 s3, 3
s_cbranch_scc1 KA_bar2
s_add_u32 s44, s4, {WS_GO}
s_addc_u32 s45, s5, 0
s_mov_b32 s46, 8192
s_mov_b32 s47, 0x00020000
v_mov_b32 v11, {PT+208}
ds_read_b128 v[48:51], v11
s_and_b32 s29, s90, 31
s_lshl_b32 s29, s29, 8
v_mov_b32 v56, 0
s_mov_b32 s28, 0
s_mov_b64 exec, 1
s_waitcnt lgkmcnt(0)
KA_poll2:
buffer_load_dwordx4 v[52:55], v56, s[44:47], s29 offen sc1
s_add_u32 s28, s28, 1
s_waitcnt vmcnt(0)
v_cmp_eq_u32 s[30:31], v48, v52
v_cmp_eq_u32 s[32:33], v49, v53
v_cmp_eq_u32 s[34:35], v50, v54
v_cmp_eq_u32 vcc, v51, v55
s_or_b64 s[30:31], s[30:31], s[32:33]
s_or_b64 s[34:35], s[34:35], vcc
s_or_b64 s[30:31], s[30:31], s[34:35]
s_cbranch_scc0 KA_pdone
s_cmp_ge_u32 s28, {2*SPIN_MAX}
s_cbranch_scc1 KA_pdone
s_sleep 2
s_branch KA_poll2
KA_pdone:
s_mov_b64 exec, -1
s_branch KA_bar2
KA_red:
s_lshr_b32 s57, s3, 2
s_mul_i32 s56, s57, {4*REG}
s_lshl_b32 s58, s61, 10
s_add_u32 s56, s56, s58
v_lshlrev_b32 v10, 4, v1
v_add_u32 v10, s56, v10
ds_read_b128 v[48:51], v10
ds_read_b128 v[52:55], v10 offset:{REG}
ds_read_b128 v[56:59], v10 offset:{2*REG}
ds_read_b128 v[60:63], v10 offset:{3*REG}
s_lshl_b32 s56, s61, 6
s_add_u32 s56, s56, {PT}
v_lshlrev_b32 v11, 4, v3
v_add_u32 v11, s56, v11
ds_read_b128 v[64:67], v11
s_mul_i32 s56, s57, 2624
s_add_u32 s56, s56, {KCL}
v_lshlrev_b32 v12, 3, v2
s_cmp_eq_u32 s61, 2
s_cselect_b64 s[54:55], -1, 0
v_mov_b32 v76, {PT+192}
s_waitcnt lgkmcnt(0)""")
    for r in range(4):
        a(f"""v_add_f32 v{48+r}, v{48+r}, v{52+r}
v_add_f32 v{56+r}, v{56+r}, v{60+r}
v_add_f32 v{48+r}, v{48+r}, v{56+r}
v_add_u32 v{68+r}, v{64+r}, v12
v_cvt_f32_u32 v{72+r}, v{68+r}
v_lshrrev_b32 v{72+r}, 16, v{72+r}
v_subrev_u32 v{72+r}, 17024, v{72+r}
v_cmp_gt_u32 vcc, 128, v{68+r}
v_cndmask_b32 v{72+r}, v{72+r}, v{68+r}, vcc
v_lshl_add_u32 v{72+r}, v{72+r}, 2, s56
v_cmp_lt_u32 vcc, 2048, v{68+r}
v_cndmask_b32 v{72+r}, v{72+r}, v76, vcc
v_cmp_eq_u32 vcc, 0, v{64+r}
s_and_b64 vcc, vcc, s[54:55]
v_cndmask_b32 v{72+r}, v{72+r}, v76, vcc
ds_write_b32 v{72+r}, v{48+r}""")
    a("KA_bar2:")
    a("s_waitcnt lgkmcnt(0)\ns_barrier")
    a.stamp()
    a(f"""buffer_load_dword v16, v40, s[8:11], 0 offen sc1
s_movk_i32 s23, 8192
buffer_load_dword v17, v40, s[8:11], s23 offen sc1
s_movk_i32 s23, 16384
buffer_load_dword v18, v40, s[8:11], s23 offen sc1
s_movk_i32 s23, 24576
buffer_load_dword v19, v40, s[8:11], s23 offen sc1
buffer_load_dword v152, v14, s[36:39], 0 offen sc1
s_movk_i32 s23, {2688*4}
buffer_load_dword v153, v14, s[36:39], s23 offen sc1
s_movk_i32 s23, {2*2688*4}
buffer_load_dword v154, v14, s[36:39], s23 offen sc1
s_mov_b32 s23, {3*2688*4}
buffer_load_dword v155, v14, s[36:39], s23 offen sc1""")
    for e in range(8): a(f"ds_read_b32 v{28+e}, v{80+e}")
    a(f"""v_mov_b32 v36, 0
v_mov_b32 v37, 0
v_mov_b32 v38, 0
v_mov_b32 v39, 0
v_lshrrev_b32 v9, 4, v0
v_mul_u32_u24 v9, {UCS}, v9
v_and_b32 v10, 15, v0
v_lshl_add_u32 v9, v10, 4, v9
v_cmp_gt_u32 vcc, 256, v0
s_and_saveexec_b64 s[32:33], vcc
ds_write_b128 v9, v[36:39] offset:4096
s_mov_b64 exec, s[32:33]
v_mul_u32_u24 v9, {KHD}, v6
v_lshl_add_u32 v9, v5, 4, v9
v_add_u32 v9, {KH}, v9
v_cmp_gt_u32 vcc, 15, v5
s_and_saveexec_b64 s[32:33], vcc
ds_write_b128 v9, v[36:39]
ds_write_b128 v9, v[36:39] offset:4352
s_mov_b64 exec, s[32:33]
s_waitcnt lgkmcnt(0)""")
    for k in range(4):
        e = 28 + 2*k
        a(f"""v_cvt_pk_bf16_f32 v{112+k}, v{e}, v{e+1}
v_lshlrev_b32 v120, 16, v{112+k}
v_and_b32 v121, 0xffff0000, v{112+k}
v_sub_f32 v{e}, v{e}, v120
v_sub_f32 v{e+1}, v{e+1}, v121
v_cvt_pk_bf16_f32 v{116+k}, v{e}, v{e+1}""")
    a(f"""ds_write_b128 v9, v[112:115] offset:240
ds_write_b128 v9, v[116:119] offset:{4352+240}
s_waitcnt vmcnt(0)
v_add_f32 v152, v152, v153
v_add_f32 v154, v154, v155
v_add_f32 v152, v152, v154
v_cvt_pk_bf16_f32 v152, v152, v152
buffer_store_short v152, v13, s[40:43], 0 offen
v_and_b32 v152, 0xffff0000, v152
v_readlane_b32 s28, v152, 0
v_readlane_b32 s31, v152, 1
v_readlane_b32 s29, v152, 2
v_readlane_b32 s34, v152, 3
v_mov_b32 v42, s28
v_mov_b32 v43, s31
v_add_f32 v40, 1.0, s29
v_add_f32 v41, 1.0, s34
v_cvt_pk_bf16_f32 v40, v40, v41
v_and_b32 v41, 0xffff0000, v40
v_lshlrev_b32 v40, 16, v40
s_lshl_b32 s31, s59, 16
s_and_b32 s30, s59, 0xffff0000
v_mov_b32 v48, s31
v_mov_b32 v49, s30""")
    a.stamp()
    a("v_lshlrev_b32 v9, 1, v0\nv_sub_u32 v9, 1022, v9")
    for k in range(4):
        src = 16 + k; e = 52 + 2*k
        a(f"""v_lshlrev_b32 v{e}, 16, v{src}
v_and_b32 v{e+1}, 0xffff0000, v{src}
v_mul_f32 v{e}, v{e}, v40
v_mul_f32 v{e+1}, v{e+1}, v41
v_cvt_pk_bf16_f32 v{e}, v{e}, v{e+1}
v_and_b32 v{e+1}, 0xffff0000, v{e}
v_lshlrev_b32 v{e}, 16, v{e}
v_add_f32 v{e}, v{e}, v42
v_add_f32 v{e+1}, v{e+1}, v43
v_cvt_pk_bf16_f32 v{e}, v{e}, v{e+1}
ds_write_b16 v9, v{e} offset:{3072-1024*k}
ds_write_b16_d16_hi v9, v{e} offset:{3072-1024*k+UCD}""")
    a(f"""v_lshlrev_b32 v10, 3, v0
v_sub_u32 v10, 4088, v10
v_and_b32 v9, 1, v0
v_sub_u32 v9, 1, v9
v_mul_u32_u24 v9, {4*UCS}, v9
v_lshrrev_b32 v11, 1, v0
v_sub_u32 v11, 255, v11
v_lshl_add_u32 v9, v11, 4, v9
s_waitcnt lgkmcnt(0)
s_barrier""")
    for d in range(2):
        E = 52 + 8*d
        for k in range(3):
            a(f"ds_read_b64 v[{E+2*k}:{E+2*k+1}], v10 offset:{8*k + d*UCD}")
    W = 80
    for d in range(2):
        E = 52 + 8*d; q = W + 16*d
        a(f"s_waitcnt lgkmcnt({3-3*d})")
        for k in range(4): a(f"v_alignbit_b32 v{q+4+k}, v{E+k+1}, v{E+k}, 16")
        for k in range(4): a(f"v_mov_b32 v{q+8+k}, v{E+k+1}")
        for k in range(4): a(f"v_alignbit_b32 v{q+12+k}, v{E+k+2}, v{E+k+1}, 16")
    for d in range(2):
        E = 52 + 8*d; q = W + 16*d
        a(f"ds_write_b128 v9, v[{E}:{E+3}] offset:{d*UCD}")
        for sg in range(1, 4):
            a(f"ds_write_b128 v9, v[{q+4*sg}:{q+4*sg+3}] offset:{sg*UCS + d*UCD}")
    a("v_mov_b32 v160, v52\nv_mov_b32 v161, v53\nv_mov_b32 v162, v60\nv_mov_b32 v163, v61\nv_mov_b32 v164, v48\nv_mov_b32 v165, v49")
    def emit_hd():
        for k in range(4):
            m = 3 - k; o = 152 + 2*k
            for d in range(2):
                src = 160 + 2*d + (m >> 1)
                if m & 1: a(f"v_and_b32 v{o+d}, 0xffff0000, v{src}")
                else: a(f"v_lshlrev_b32 v{o+d}, 16, v{src}")
            a(f"""v_mul_f32 v{o}, v{o}, v164
v_mul_f32 v{o+1}, v{o+1}, v165
v_cvt_pk_bf16_f32 v{o}, v{o}, v{o+1}
v_and_b32 v{o+1}, 0xffff0000, v{o}
v_lshlrev_b32 v{o}, 16, v{o}""")
    a("s_waitcnt lgkmcnt(0)\ns_barrier")
    a.stamp()
    ACC = 112
    dq = DSQ(a)
    AF = (16, 48); BFc = 80
    def rdA(e, b1):
        r = AF[e] + 4*b1
        dq.issue(f"ds_read_b128 v[{r}:{r+3}], v148 offset:{64*e + 512*(7-b1)}", ("A", e, b1))
    def rdB(e, k1):
        r = BFc + 8*((e*8+k1) % 3)
        dq.issue(f"ds_read_b128 v[{r}:{r+3}], v149 offset:{64*e + 512*k1}", ("Bh", e, k1))
        dq.issue(f"ds_read_b128 v[{r+4}:{r+7}], v149 offset:{64*e + 512*k1 + 4352}", ("Bl", e, k1))
    rdB(0, 0)
    for b1 in range(8): rdA(0, b1)
    rdB(0, 1)
    seq = [(e, k1) for e in range(2) for k1 in range(8)]
    for si, (e, k1) in enumerate(seq):
        r = BFc + 8*(si % 3)
        if si + 2 < len(seq): rdB(*seq[si+2])
        if e == 0: rdA(1, k1)
        dq.wait(("Bl", e, k1))
        for b1 in range(8 - k1):
            dq.wait(("A", e, b1))
            t = k1 + b1; c = ACC + 4*t; ar = AF[e] + 4*b1
            c0 = "0" if (e == 0 and k1 == 0) else f"v[{c}:{c+3}]"
            a(f"v_mfma_f32_16x16x32_bf16 v[{c}:{c+3}], v[{ar}:{ar+3}], v[{r}:{r+3}], {c0}")
            a(f"v_mfma_f32_16x16x32_bf16 v[{c}:{c+3}], v[{ar}:{ar+3}], v[{r+4}:{r+7}], v[{c}:{c+3}]")
        if si == 1: emit_hd()
    a.stamp()
    a("s_waitcnt lgkmcnt(0)\ns_barrier")
    for t in range(8):
        a(f"ds_write_b128 v150, v[{ACC+4*t}:{ACC+4*t+3}] offset:{1024*t}")
    a("v_lshlrev_b32 v1, 4, v0\ns_waitcnt lgkmcnt(0)\ns_barrier")
    for d in range(2):
        for q in range(4):
            r = 16 + 16*d + 4*q
            a(f"ds_read_b128 v[{r}:{r+3}], v1 offset:{32768*d + 8192*q}")
    a("s_waitcnt lgkmcnt(0)")
    for d in range(2):
        for k in range(4):
            r = 16 + 16*d + k
            a(f"v_add_f32 v{r}, v{r}, v{r+4}\nv_add_f32 v{r+8}, v{r+8}, v{r+12}\nv_add_f32 v{r}, v{r}, v{r+8}")
    for k in range(4):
        o = 152 + 2*k
        a(f"""v_cvt_pk_bf16_f32 v50, v{16+k}, v{32+k}
v_and_b32 v51, 0xffff0000, v50
v_lshlrev_b32 v50, 16, v50
v_add_f32 v50, v50, v{o}
v_add_f32 v51, v51, v{o+1}
v_cvt_pk_bf16_f32 v{52+k}, v50, v51""")
    a("buffer_store_dwordx4 v[52:55], v1, s[16:19], 0 offen\ns_mov_b32 s2, s90")
    a.stamp(); a.dump_stamps(0); a.nst = 1
    a("s_branch KA_end")
    a("KA_lnb:")
    X = 40
    for m in range(7):
        a(f"s_waitcnt vmcnt({6-m})")
        for q in range(4):
            a(f"v_lshlrev_b32 v{X+8*m+2*q}, 16, v{8+4*m+q}\nv_and_b32 v{X+8*m+2*q+1}, 0xffff0000, v{8+4*m+q}")
    a.stamp()
    ln_stats(a, X, 56, 110, 112, 100, 101, 102, 103, 20, 21)
    a.stamp()
    for m in range(7):
        for q in range(4):
            e = X+8*m+2*q
            a(f"""v_sub_f32 v{e}, v{e}, v110
v_sub_f32 v{e+1}, v{e+1}, v110
v_cvt_pk_bf16_f32 v{e}, v{e}, v{e+1}
v_and_b32 v{e+1}, 0xffff0000, v{e}
v_lshlrev_b32 v{e}, 16, v{e}
v_mul_f32 v{e}, v{e}, v112
v_mul_f32 v{e+1}, v{e+1}, v112
v_cvt_pk_bf16_f32 v{8+4*m+q}, v{e}, v{e+1}""")
        a(f"s_mov_b32 s22, {m*262144}\nbuffer_store_dwordx4 v[{8+4*m}:{11+4*m}], v4, s[16:19], s22 offen sc1")
    a(f"""s_waitcnt vmcnt(0)
s_cmp_lt_u32 s2, 224
s_cbranch_scc1 KA_sig
s_barrier
KA_sig:
s_and_b32 s29, s2, 3
s_lshl_b32 s29, s29, 6
v_mov_b32 v8, 1
v_cmp_eq_u32 vcc, 0, v1
v_bfrev_b32 v10, 1
v_cndmask_b32 v9, v10, 0, vcc
buffer_atomic_add v8, v9, s[24:27], s29 offen sc0
s_waitcnt vmcnt(0)
v_readfirstlane_b32 s30, v8
s_cmp_lg_u32 s30, 105
s_cbranch_scc1 KA_notlast
v_not_b32 v12, v120
buffer_store_dword v12, v121, s[44:47], 0 offen sc1
KA_notlast:""")
    a.stamp()
    a(f"""v_mov_b32 v11, {PT+208}
ds_write_b128 v11, v[124:127]
s_waitcnt lgkmcnt(0)""")
    if asmgen.STAMPS:
        a("v_mov_b32 v0, v1\ns_add_u32 s2, s2, 256")
        a.dump_stamps(0)
        a("s_mov_b64 exec, -1")
    a("s_branch KA_end")
    a.nst = 1
    a(f"""KA_rep:
s_cmp_ge_u32 s2, 252
s_cbranch_scc1 KA_end
s_waitcnt lgkmcnt(0)
s_load_dwordx4 s[8:11], s[0:1], {KA['wg']}
s_load_dwordx2 s[24:25], s[0:1], {KA['wd']}
s_sub_u32 s12, s2, 224
s_lshl_b32 s12, s12, 3
s_add_u32 s12, s12, s3
s_mul_i32 s28, s12, 7168
s_cmp_ge_u32 s12, 112
s_cselect_b32 s13, 1, 0
s_mul_i32 s14, s13, 112
s_sub_u32 s12, s12, s14
v_lshrrev_b32 v2, 4, v1
v_and_b32 v3, 15, v1
s_lshl_b32 s14, s12, 2
v_add_u32 v2, s14, v2
s_movk_i32 s15, 3584
v_mul_lo_u32 v5, v2, s15
v_lshl_add_u32 v5, v3, 4, v5
v_lshrrev_b32 v6, 1, v3
s_movk_i32 s15, 28672
v_mul_lo_u32 v6, v6, s15
v_lshl_add_u32 v6, v2, 5, v6
v_and_b32 v7, 1, v3
v_lshl_add_u32 v6, v7, 4, v6
s_mul_i32 s15, s13, 14336
v_add_u32 v6, s15, v6
s_waitcnt lgkmcnt(0)
s_cmp_eq_u32 s13, 1
s_cselect_b32 s16, s10, s8
s_cselect_b32 s17, s11, s9
s_mov_b32 s18, {448*3584}
s_mov_b32 s19, 0x00020000""")
    srd(a, 20, 4, 112*28672, WS_WPK)
    a("s_barrier")
    for c in range(14):
        a(f"buffer_load_dwordx4 v[{8+4*c}:{11+4*c}], v5, s[16:19], 0 offen offset:{256*c}")
    for c in range(14):
        a(f"s_mov_b32 s15, {8*28672*c}\ns_waitcnt vmcnt({13})\nbuffer_store_dwordx4 v[{8+4*c}:{11+4*c}], v6, s[20:23], s15 offen sc1")
    a(f"s_mov_b32 s26, {1792*896}\ns_mov_b32 s27, 0x00020000\nv_lshlrev_b32 v7, 4, v1")
    for c in range(7):
        a(f"s_add_u32 s15, s28, {1024*c}\nbuffer_load_dwordx4 v[{64+4*c}:{67+4*c}], v7, s[24:27], s15 offen")
    a("s_waitcnt vmcnt(0)\ns_branch KA_end")
    a("KA_modb:")
    a(f"s_mov_b32 s14, {LOG2E | 0x80000000}")
    a("s_waitcnt vmcnt(14)")
    for it in range(14):
        a(f"v_lshlrev_b32 v{8+it}, 16, v{8+it}\nv_mul_f32 v{80+it}, s14, v{8+it}")
    for it in range(14): a(f"v_exp_f32 v{80+it}, v{80+it}")
    for it in range(14): a(f"v_add_f32 v{80+it}, 1.0, v{80+it}")
    for it in range(14): a(f"v_rcp_f32 v{80+it}, v{80+it}")
    for it in range(14): a(f"v_mul_f32 v{8+it}, v{8+it}, v{80+it}")
    for it in range(0, 14, 2):
        a(f"v_cvt_pk_bf16_f32 v{8+it}, v{8+it}, v{9+it}\nv_and_b32 v{9+it}, 0xffff0000, v{8+it}\nv_lshlrev_b32 v{8+it}, 16, v{8+it}")
    for it in range(14):
        a(f"s_waitcnt vmcnt({13-it})")
        for q in range(4):
            a(f"v_lshlrev_b32 v96, 16, v{24+4*it+q}\nv_and_b32 v97, 0xffff0000, v{24+4*it+q}")
            if it == 0: a(f"v_mul_f32 v{100+2*q}, v96, v{8+it}\nv_mul_f32 v{101+2*q}, v97, v{8+it}")
            else: a(f"v_fmac_f32 v{100+2*q}, v96, v{8+it}\nv_fmac_f32 v{101+2*q}, v97, v{8+it}")
    a.stamp()
    for q in range(8):
        a(f"v_add_f32 v{100+q}, v{100+q}, v{100+q} row_ror:8 row_mask:0xf bank_mask:0xf")
    for q in range(8): a(f"v_mov_b32 v{110+q}, v{100+q}")
    for q in range(8): a(f"v_permlane32_swap_b32 v{100+q}, v{110+q}")
    for q in range(8): a(f"v_add_f32 v{100+q}, v{100+q}, v{110+q}")
    for q in range(8): a(f"v_mov_b32 v{110+q}, v{100+q}")
    for q in range(8): a(f"v_permlane16_swap_b32 v{100+q}, v{110+q}")
    for q in range(8): a(f"v_add_f32 v{100+q}, v{100+q}, v{110+q}")
    a(f"""s_mul_i32 s12, s37, {2688*4}
s_lshl_b32 s13, s36, 8
s_add_u32 s12, s12, s13
v_lshlrev_b32 v3, 5, v1
v_bfrev_b32 v4, 1
v_cmp_gt_u32 vcc, 8, v1
v_cndmask_b32 v3, v4, v3, vcc
buffer_store_dwordx4 v[100:103], v3, s[24:27], s12 offen sc1
buffer_store_dwordx4 v[104:107], v3, s[24:27], s12 offen offset:16 sc1
s_waitcnt vmcnt(0)""")
    a.stamp()
    if asmgen.STAMPS:
        a("v_mov_b32 v0, v1\ns_add_u32 s2, s28, 512")
        a.dump_stamps(0)
        a("s_mov_b64 exec, -1\ns_mov_b32 s2, s28")
    a(f"""s_and_b32 s29, s2, 3
s_lshl_b32 s29, s29, 6
v_mov_b32 v8, 1
v_cmp_eq_u32 vcc, 0, v1
v_bfrev_b32 v10, 1
v_cndmask_b32 v9, v10, 0, vcc
buffer_atomic_add v8, v9, s[32:35], s29 offen sc0
s_waitcnt vmcnt(0)
v_readfirstlane_b32 s30, v8
s_cmp_lg_u32 s30, 105
s_cbranch_scc1 KA_end
v_not_b32 v12, v120
buffer_store_dword v12, v121, s[44:47], 0 offen sc1
KA_end:
s_endpgm""")
    return a.finalize(), 168
```

```python
from gen import *
WS_H2 = 0x1000000

def unpack(a, lo, hi, src):
    a(f"v_lshlrev_b32 v{lo}, 16, v{src}\nv_and_b32 v{hi}, 0xffff0000, v{src}")
def rnd_pair(a, e):
    a(f"v_cvt_pk_bf16_f32 v{e}, v{e}, v{e+1}\nv_and_b32 v{e+1}, 0xffff0000, v{e}\nv_lshlrev_b32 v{e}, 16, v{e}")

def gen_k3():
    a = Asm()
    a.stamp()
    a(f"""s_cmp_ge_u32 s2, 256
s_cbranch_scc1 K3_end
s_and_b32 s56, s2, 7
s_lshr_b32 s57, s2, 5
s_lshl_b32 s57, s57, 3
s_add_u32 s56, s56, s57
s_lshl_b32 s56, s56, 2
s_bfe_u32 s57, s2, 0x20003
s_add_u32 s2, s56, s57
s_load_dwordx2 s[4:5], s[0:1], {KA['ws']}
s_load_dwordx2 s[6:7], s[0:1], {KA['x']}
s_load_dwordx2 s[8:9], s[0:1], {KA['wr']}
s_load_dwordx2 s[10:11], s[0:1], {KA['out']}
v_and_b32 v1, 7, v0
v_bfe_u32 v2, v0, 3, 3
v_lshrrev_b32 v3, 6, v0
v_lshl_add_u32 v4, v3, 3, v1
s_lshl_b32 s12, s2, 3
v_add_u32 v5, s12, v2
s_movk_i32 s13, 896
v_mul_lo_u32 v6, v5, s13
v_lshl_add_u32 v6, v4, 4, v6
v_lshlrev_b32 v7, 15, v4
v_lshl_add_u32 v7, v5, 2, v7
v_lshlrev_b32 v8, 4, v4
s_waitcnt lgkmcnt(0)""")
    srd(a, 16, 6, XSZ)
    srd(a, 20, 4, XSZ, WS_YYT)
    srd(a, 24, 4, 5376, WS_MOD)
    srd(a, 28, 8, 896)
    srd(a, 32, 10, XSZ)
    srd(a, 36, 4, XSZ, WS_X1)
    srd(a, 40, 4, 0x6000, WS_R)
    srd(a, 52, 4, XSZ, WS_H2)
    a("buffer_load_dwordx4 v[12:15], v6, s[16:19], 0 offen")
    for q in range(4):
        a(f"s_mov_b32 s14, {8192*q}\nbuffer_load_dword v{16+q}, v7, s[20:23], s14 offen")
    a(f"""buffer_load_dwordx4 v[20:23], v8, s[24:27], 0 offen offset:1792
buffer_load_dwordx4 v[24:27], v8, s[24:27], 0 offen offset:3584
buffer_load_dwordx4 v[28:31], v8, s[24:27], 0 offen offset:2688
s_movk_i32 s14, 4480
buffer_load_dwordx4 v[32:35], v8, s[24:27], s14 offen
buffer_load_dwordx4 v[36:39], v8, s[28:31], 0 offen
s_mov_b32 s44, {f2u(1.0/64)}
s_mov_b32 s45, {f2u(1.0/7)}
s_mov_b32 s46, {f2u(64.0)}
s_mov_b32 s47, {f2u(1.0/448)}
s_mov_b32 s48, {f2u(1e-5)}
v_lshlrev_b32 v9, 6, v2
v_lshl_add_u32 v10, v3, 3, v9
s_waitcnt vmcnt(4)""")
    a.stamp()
    X = 40
    for q in range(4):
        e = X + 2*q
        unpack(a, e, e+1, 16+q)
        unpack(a, 60, 61, 20+q)
        a(f"v_pk_mul_f32 v[{e}:{e+1}], v[{e}:{e+1}], v[60:61]")
        rnd_pair(a, e)
        unpack(a, 60, 61, 12+q)
        a(f"v_pk_add_f32 v[{e}:{e+1}], v[{e}:{e+1}], v[60:61]")
        a(f"v_cvt_pk_bf16_f32 v{48+q}, v{e}, v{e+1}")
        unpack(a, e, e+1, 48+q)
    a("buffer_store_dwordx4 v[48:51], v6, s[36:39], 0 offen")
    a(f"""v_add_f32 v52, v40, v41
v_add_f32 v53, v42, v43
v_add_f32 v54, v44, v45
v_add_f32 v55, v46, v47
v_add_f32 v52, v52, v53
v_add_f32 v54, v54, v55
v_add_f32 v52, v52, v54""")
    sum8lanes(a, 52, 53)
    a("v_mul_f32 v52, s44, v52")
    a("v_sub_f32 v54, v40, v52\nv_mul_f32 v53, v54, v54")
    for i in range(1, 8):
        a(f"v_sub_f32 v54, v{40+i}, v52\nv_fmac_f32 v53, v54, v54")
    sum8lanes(a, 53, 54)
    a(f"""ds_write_b64 v10, v[52:53]
s_waitcnt lgkmcnt(0)
s_barrier
ds_read_b128 v[64:67], v9
ds_read_b128 v[68:71], v9 offset:16
ds_read_b128 v[72:75], v9 offset:32
ds_read_b64 v[76:77], v9 offset:48""")
    a.stamp()
    a("s_waitcnt vmcnt(1)")
    for q in range(4):
        e = 80 + 2*q
        unpack(a, e, e+1, 24+q)
        a(f"v_pk_add_f32 v[{e}:{e+1}], v[{e}:{e+1}], 1.0 op_sel_hi:[1,0]")
        rnd_pair(a, e)
        unpack(a, 88+2*q, 89+2*q, 28+q)
    a(f"""s_waitcnt lgkmcnt(0)
v_add_f32 v52, v64, v66
v_add_f32 v53, v68, v70
v_add_f32 v54, v72, v74
v_add_f32 v52, v52, v76
v_add_f32 v52, v52, v53
v_add_f32 v52, v52, v54
v_mul_f32 v52, s45, v52
v_add_f32 v53, v65, v67
v_add_f32 v54, v69, v71
v_add_f32 v55, v73, v75
v_add_f32 v53, v53, v77
v_add_f32 v53, v53, v54
v_add_f32 v53, v53, v55
v_sub_f32 v55, v64, v52
v_mul_f32 v54, v55, v55""")
    for i in range(1, 7):
        a(f"v_sub_f32 v55, v{64+2*i}, v52\nv_fmac_f32 v54, v55, v55")
    a("v_fmac_f32 v53, s46, v54\nv_mul_f32 v53, s47, v53")
    bf16r(a, 56, 52)
    bf16r(a, 53, 53)
    a("v_add_f32 v53, s48, v53")
    bf16r(a, 53, 53)
    a("v_sqrt_f32 v53, v53")
    bf16r(a, 53, 53)
    a("v_rcp_f32 v57, v53\nv_mov_b32 v58, v56\nv_mov_b32 v59, v57")
    a("v_mov_b32 v100, v56\nv_mov_b32 v101, v56\nv_mov_b32 v102, v57\nv_mov_b32 v103, v57")
    for q in range(4):
        e = 104 + 2*q; x = X + 2*q
        a(f"v_pk_add_f32 v[{e}:{e+1}], v[{x}:{x+1}], v[100:101] neg_lo:[0,1] neg_hi:[0,1]")
        rnd_pair(a, e)
        a(f"v_pk_mul_f32 v[{e}:{e+1}], v[{e}:{e+1}], v[102:103]")
        rnd_pair(a, e)
        a(f"v_pk_mul_f32 v[{e}:{e+1}], v[{e}:{e+1}], v[{80+2*q}:{81+2*q}]")
        rnd_pair(a, e)
        a(f"v_pk_add_f32 v[{e}:{e+1}], v[{e}:{e+1}], v[{88+2*q}:{89+2*q}]")
        a(f"v_cvt_pk_bf16_f32 v{116+q}, v{e}, v{e+1}")
        unpack(a, e, e+1, 116+q)
        unpack(a, 60, 61, 36+q)
        if q == 0: a(f"v_mul_f32 v62, v{e}, v60\nv_mul_f32 v63, v{e+1}, v61")
        else: a(f"v_fmac_f32 v62, v{e}, v60\nv_fmac_f32 v63, v{e+1}, v61")
        unpack(a, 60, 61, 32+q)
        a(f"v_pk_mul_f32 v[60:61], v[60:61], v[{e}:{e+1}]")
        rnd_pair(a, 60)
        a(f"v_pk_add_f32 v[60:61], v[60:61], v[{x}:{x+1}]")
        a(f"v_cvt_pk_bf16_f32 v{112+q}, v60, v61")
    a("buffer_store_dwordx4 v[112:115], v6, s[32:35], 0 offen\nbuffer_store_dwordx4 v[116:119], v6, s[52:55], 0 offen")
    a.stamp()
    a("v_add_f32 v62, v62, v63")
    sum8lanes(a, 62, 63)
    a(f"""v_lshlrev_b32 v9, 5, v2
v_lshl_add_u32 v10, v3, 2, v9
ds_write_b32 v10, v62 offset:512
s_waitcnt lgkmcnt(0)
s_barrier
v_cmp_gt_u32 vcc, 64, v0
s_and_saveexec_b64 s[50:51], vcc
s_cbranch_execz K3_end
ds_read_b128 v[64:67], v9 offset:512
ds_read_b96 v[68:70], v9 offset:528
v_cmp_eq_u32 vcc, 0, v1
v_lshlrev_b32 v11, 2, v5
v_lshlrev_b32 v12, 3, v5
v_bfrev_b32 v13, 1
v_cndmask_b32 v11, v13, v11, vcc
v_cndmask_b32 v12, v13, v12, vcc
s_movk_i32 s14, 0x2000
s_waitcnt lgkmcnt(0)
v_add_f32 v64, v64, v65
v_add_f32 v66, v66, v67
v_add_f32 v68, v68, v69
v_add_f32 v64, v64, v66
v_add_f32 v68, v68, v70
v_add_f32 v64, v64, v68""")
    bf16r(a, 64, 64)
    a(f"""v_ashrrev_i32 v65, 31, v64
v_or_b32 v65, 0x80000000, v65
v_xor_b32 v64, v64, v65
v_and_b32 v64, 0xffff0000, v64
v_sub_u32 v65, 2047, v5
v_or_b32 v64, v64, v65
buffer_store_dword v64, v11, s[40:43], 0 offen
""")
    a.stamp(); a.dump_stamps(2)
    a("""K3_end:
s_endpgm""")
    return a.finalize(), 120
```

```python
from gen import *
WS_WPK = 0xC00000
WS_H2 = 0x1000000
from gen_k3 import unpack, rnd_pair

class Pool:
    def __init__(self, regs): self.free = list(regs)
    def get(self): return self.free.pop(0)
    def put(self, r): self.free.append(r)

def CE(a, L, i, j, pool):
    hi = pool.get()
    a(f"v_max_u32 v{hi}, v{L[i]}, v{L[j]}\nv_min_u32 v{L[j]}, v{L[i]}, v{L[j]}")
    pool.put(L[i]); L[i] = hi

SORT8 = [(0,1),(2,3),(4,5),(6,7),(0,2),(1,3),(4,6),(5,7),(1,2),(5,6),(0,4),(3,7),(1,5),(2,6),(1,4),(3,6),(2,4),(3,5),(3,4)]
def bitonic_fix(a, L, pool):
    for (i, j) in [(0,4),(1,5),(2,6),(3,7),(0,2),(1,3),(4,6),(5,7),(0,1),(2,3),(4,5),(6,7)]:
        CE(a, L, i, j, pool)
def merge_dpp(a, L, pool, dpp, fix=True):
    N = [pool.get() for _ in range(8)]
    for i in range(8):
        a(f"v_max_u32 v{N[i]}, v{L[7-i]}, v{L[i]} {dpp}")
    for r in L: pool.put(r)
    L[:] = N
    if fix: bitonic_fix(a, L, pool)

def silu_inplace(a, v, t, s_nl2e):
    a(f"""v_mul_f32 v{t}, s{s_nl2e}, v{v}
v_exp_f32 v{t}, v{t}
v_add_f32 v{t}, 1.0, v{t}
v_rcp_f32 v{t}, v{t}
v_mul_f32 v{v}, v{v}, v{t}""")

def gen_k4():
    a = Asm()
    a.stamp()
    a(f"""s_cmp_ge_u32 s2, 112
s_cbranch_scc1 K4_end
s_load_dwordx2 s[4:5], s[0:1], {KA['ws']}
s_load_dwordx2 s[6:7], s[0:1], {KA['wd']}""")
    a(f"""v_lshrrev_b32 v4, 6, v0
v_readfirstlane_b32 s3, v4
s_cmp_ge_u32 s3, 4
s_cbranch_scc1 K4_main
v_mov_b32 v6, v0
v_and_b32 v1, 63, v0
v_lshlrev_b32 v5, 5, v6
s_waitcnt lgkmcnt(0)
s_add_u32 s16, s4, {WS_R}
s_addc_u32 s17, s5, 0
s_mov_b32 s18, 0x6000
s_mov_b32 s19, 0x00020000
buffer_load_dwordx4 v[8:11], v5, s[16:19], 0 offen
buffer_load_dwordx4 v[12:15], v5, s[16:19], 0 offen offset:16
""")
    a.nst = 1
    a.stamp()
    a("s_waitcnt vmcnt(0)")
    a.stamp()
    L = list(range(8, 16)); pool = Pool(range(18, 40))
    for (i, j) in SORT8: CE(a, L, i, j, pool)
    for dpp in ("quad_perm:[1,0,3,2] row_mask:0xf bank_mask:0xf", "quad_perm:[2,3,0,1] row_mask:0xf bank_mask:0xf",
                "row_half_mirror row_mask:0xf bank_mask:0xf", "row_mirror row_mask:0xf bank_mask:0xf",
                "row_bcast:15 row_mask:0xa bank_mask:0xf", "row_bcast:31 row_mask:0xc bank_mask:0xf"):
        merge_dpp(a, L, pool, dpp)
    a(f"""v_lshlrev_b32 v17, 5, v4
v_cmp_eq_u32 vcc, 63, v1
s_and_saveexec_b64 s[44:45], vcc""")
    for i in range(8):
        a(f"ds_write_b32 v17, v{L[i]} offset:{4*i}")
    a("""s_mov_b64 exec, s[44:45]
s_waitcnt lgkmcnt(0)""")
    a.stamp()
    import asmgen
    if asmgen.STAMPS:
        a("v_mov_b32 v0, v6\ns_add_u32 s2, s2, 256")
        a.dump_stamps(3)
        a("s_mov_b64 exec, -1")
    a("s_barrier")
    a("s_endpgm\nK4_main:")
    a.nst = 1
    a(f"""v_and_b32 v1, 63, v0
v_and_b32 v2, 15, v1
v_lshrrev_b32 v3, 4, v1
v_subrev_u32 v0, 256, v0
v_subrev_u32 v4, 4, v4
s_lshl_b32 s12, s2, 5
v_lshlrev_b32 v6, 11, v4
v_lshl_add_u32 v6, v1, 4, v6
s_mul_i32 s13, s2, 28672
v_add_u32 v6, s13, v6
s_waitcnt lgkmcnt(0)""")
    srd(a, 20, 4, 112*28672, WS_WPK)
    srd(a, 52, 6, 1792*896)
    a(f"""s_movk_i32 s14, 14336
buffer_load_dwordx4 v[128:131], v6, s[20:23], 0 offen
buffer_load_dwordx4 v[132:135], v6, s[20:23], 0 offen offset:1024
buffer_load_dwordx4 v[136:139], v6, s[20:23], s14 offen
buffer_load_dwordx4 v[140:143], v6, s[20:23], s14 offen offset:1024
v_lshlrev_b32 v112, 4, v0
s_mul_i32 s60, s2, {16*896}
s_add_u32 s14, s60, 7168
buffer_load_dwordx4 v[144:147], v112, s[52:55], s60 offen
buffer_load_dwordx4 v[148:151], v112, s[52:55], s14 offen""")
    srd(a, 28, 4, XSZ, WS_H2)
    srd(a, 32, 4, XSZ, WS_X1)
    srd(a, 40, 4, 256+2*7168, WS_SEL)
    srd(a, 56, 4, 112*14336, WS_PART)
    a.stamp()
    a(f"""v_lshlrev_b32 v7, 7, v4
v_lshl_add_u32 v7, v3, 4, v7
v_lshlrev_b32 v113, 12, v4
v_lshl_add_u32 v113, v1, 4, v113
v_add_u32 v113, 16384, v113
v_lshlrev_b32 v114, 12, v4
v_lshl_add_u32 v114, v3, 8, v114
v_lshrrev_b32 v115, 2, v2
v_lshl_add_u32 v114, v115, 5, v114
v_and_b32 v115, 3, v2
v_lshl_add_u32 v114, v115, 3, v114
v_add_u32 v114, 16384, v114
v_and_b32 v16, 1, v1
v_cmp_eq_u32 s[46:47], 1, v16
v_and_b32 v16, 2, v1
v_cmp_eq_u32 s[48:49], 2, v16
v_and_b32 v16, 4, v1
v_cmp_eq_u32 s[50:51], 4, v16
v_and_b32 v57, 7, v1
s_movk_i32 s13, 896
v_mul_lo_u32 v57, v57, s13
v_add_u32 v57, v57, v7
v_bfrev_b32 v56, 1
v_cmp_gt_u32 vcc, 8, v2
v_cndmask_b32 v57, v56, v57, vcc
v_lshlrev_b32 v58, 2, v0
v_cmp_gt_u32 vcc, 8, v0
v_cndmask_b32 v56, v56, v58, vcc
v_lshlrev_b32 v59, 11, v4
v_lshl_add_u32 v59, v1, 4, v59
v_lshrrev_b32 v60, 4, v0
v_lshrrev_b32 v61, 2, v60
v_lshlrev_b32 v61, 8, v61
v_lshl_add_u32 v61, v2, 4, v61
v_and_b32 v62, 3, v60
v_lshl_add_u32 v61, v62, 2, v61
v_lshlrev_b32 v62, 5, v2
v_lshl_add_u32 v62, v60, 2, v62
v_and_b32 v17, 3, v1
v_lshlrev_b32 v17, 5, v17
s_mov_b32 s15, {LOG2E | 0x80000000}
s_waitcnt vmcnt(2)
ds_write_b128 v113, v[128:131]
ds_write_b128 v113, v[132:135] offset:1024
ds_write_b128 v113, v[136:139] offset:2048
ds_write_b128 v113, v[140:143] offset:3072
s_waitcnt lgkmcnt(0)""")
    for mat in range(2):
        for s in range(2):
            for h in range(2):
                r = 64 + 8*mat + 4*s + 2*h
                a(f"ds_read_b64_tr_b16 v[{r}:{r+1}], v114 offset:{2048*mat + 1024*s + 128*h}")
    a.stamp()
    a("s_barrier")
    a.stamp()
    a("""ds_read_b128 v[8:11], v17
ds_read_b128 v[12:15], v17 offset:16
s_waitcnt lgkmcnt(0)""")
    L = list(range(8, 16)); pool = Pool(range(18, 40))
    merge_dpp(a, L, pool, "quad_perm:[1,0,3,2] row_mask:0xf bank_mask:0xf")
    merge_dpp(a, L, pool, "quad_perm:[2,3,0,1] row_mask:0xf bank_mask:0xf")
    a.stamp()
    for i in range(4): a(f"v_cndmask_b32 v{40+i}, v{L[2*i]}, v{L[2*i+1]}, s[46:47]")
    a("""v_cndmask_b32 v40, v40, v41, s[48:49]
v_cndmask_b32 v42, v42, v43, s[48:49]
v_cndmask_b32 v40, v40, v42, s[50:51]
v_and_b32 v41, 0x7ff, v40
v_sub_u32 v41, 2047, v41
v_mul_lo_u32 v42, v41, s13
v_add_u32 v42, v42, v7
buffer_load_dwordx4 v[44:47], v42, s[28:31], 0 offen
buffer_load_dwordx4 v[48:51], v42, s[28:31], 0 offen offset:64
s_waitcnt vmcnt(2)
ds_write_b128 v112, v[144:147] offset:45056
ds_write_b128 v112, v[148:151] offset:52224
v_lshlrev_b32 v112, 1, v0
s_cmp_lg_u32 s2, 0
s_cbranch_scc1 K4_nosel
buffer_load_dwordx4 v[116:119], v42, s[32:35], 0 offen
buffer_load_dwordx4 v[120:123], v42, s[32:35], 0 offen offset:64
v_and_b32 v54, 0xffff0000, v40
v_ashrrev_i32 v55, 31, v54
v_not_b32 v55, v55
v_or_b32 v55, 0x80000000, v55
v_xor_b32 v54, v54, v55
v_and_b32 v54, 0xffff0000, v54
v_mul_f32 v55, s15, v54
v_exp_f32 v55, v55
v_add_f32 v55, 1.0, v55
v_rcp_f32 v55, v55""")
    bf16r(a, 55, 55)
    a("""buffer_store_dword v41, v56, s[40:43], 0 offen
buffer_store_dword v55, v56, s[40:43], 0 offen offset:32
s_movk_i32 s13, 7168
s_waitcnt vmcnt(2)
buffer_store_dwordx4 v[116:119], v57, s[40:43], 0 offen offset:256
buffer_store_dwordx4 v[120:123], v57, s[40:43], 0 offen offset:320
buffer_store_dwordx4 v[44:47], v57, s[40:43], s13 offen offset:256
buffer_store_dwordx4 v[48:51], v57, s[40:43], s13 offen offset:320
s_branch K4_sel2
K4_nosel:
s_waitcnt lgkmcnt(0)""")
    a("s_waitcnt vmcnt(0)\nK4_sel2:\ns_waitcnt lgkmcnt(0)")
    a.stamp()
    a("""v_mfma_f32_16x16x32_bf16 v[8:11], v[44:47], v[64:67], 0
v_mfma_f32_16x16x32_bf16 v[12:15], v[44:47], v[72:75], 0
v_mfma_f32_16x16x32_bf16 v[8:11], v[48:51], v[68:71], v[8:11]
v_mfma_f32_16x16x32_bf16 v[12:15], v[48:51], v[76:79], v[12:15]""")
    a("""ds_write_b128 v59, v[8:11] offset:256
ds_write_b128 v59, v[12:15] offset:1280
s_waitcnt lgkmcnt(0)
s_barrier
v_cmp_gt_u32 vcc, 128, v0
s_and_saveexec_b64 s[44:45], vcc
s_cbranch_execz K4_join""")
    for m in range(7):
        a(f"ds_read_b32 v{64+m}, v61 offset:{256+2048*m}\nds_read_b32 v{72+m}, v61 offset:{1280+2048*m}")
    a("""s_waitcnt lgkmcnt(0)
v_add_f32 v64, v64, v65
v_add_f32 v72, v72, v73
v_add_f32 v66, v66, v67
v_add_f32 v74, v74, v75
v_add_f32 v68, v68, v69
v_add_f32 v76, v76, v77
v_add_f32 v64, v64, v70
v_add_f32 v72, v72, v78
v_add_f32 v66, v66, v68
v_add_f32 v74, v74, v76
v_add_f32 v64, v64, v66
v_add_f32 v65, v72, v74""")
    rnd_pair(a, 64)
    silu_inplace(a, 64, 72, 15)
    bf16r(a, 64, 64)
    a("v_mul_f32 v64, v64, v65")
    bf16r(a, 64, 64)
    a("""ds_write_b32 v62, v64 offset:14848
s_waitcnt lgkmcnt(0)
K4_join:
s_mov_b64 exec, s[44:45]""")
    for i in range(16):
        a(f"ds_read_u16 v{96+i}, v112 offset:{45056+896*i}")
    a("s_waitcnt lgkmcnt(0)")
    for i in range(16): a(f"v_lshlrev_b32 v{96+i}, 16, v{96+i}")
    a("""s_barrier
v_mov_b32 v17, 14848""")
    a.stamp()
    AB = [64, 72, 80, 88, 128, 136, 144, 152]
    for i in range(16):
        ab = AB[i%8]
        a(f"ds_read_b128 v[{ab}:{ab+3}], v17 offset:{32*i}\nds_read_b128 v[{ab+4}:{ab+7}], v17 offset:{32*i+16}")
        if i % 8 == 7:
            for kk in range(8):
                ii = i - 7 + kk
                a(f"s_waitcnt lgkmcnt({14-2*kk})")
                for tp in range(4):
                    src = AB[kk] + 2*tp
                    wb = 96 + (ii & ~1)
                    if ii == 0:
                        a(f"v_pk_mul_f32 v[{8+2*tp}:{9+2*tp}], v[{src}:{src+1}], v[{wb}:{wb+1}] op_sel_hi:[1,0]")
                    elif ii & 1:
                        a(f"v_pk_fma_f32 v[{8+2*tp}:{9+2*tp}], v[{src}:{src+1}], v[{wb}:{wb+1}], v[{8+2*tp}:{9+2*tp}] op_sel:[0,1,0] op_sel_hi:[1,1,1]")
                    else:
                        a(f"v_pk_fma_f32 v[{8+2*tp}:{9+2*tp}], v[{src}:{src+1}], v[{wb}:{wb+1}], v[{8+2*tp}:{9+2*tp}] op_sel_hi:[1,0,1]")
    a("s_mul_i32 s60, s2, 14336\nv_lshlrev_b32 v17, 2, v0")
    for t in range(8):
        a(f"s_add_u32 s14, s60, {1792*t}\nbuffer_store_dword v{8+t}, v17, s[56:59], s14 offen")
    a.stamp(); a.dump_stamps(3)
    a("""K4_end:
s_endpgm""")
    return a.finalize(), 160


def gen_k5():
    a = Asm()
    a.stamp()
    a(f"""s_cmp_ge_u32 s2, 56
s_cbranch_scc1 K5_end
s_load_dwordx2 s[4:5], s[0:1], {KA['ws']}
s_load_dwordx2 s[10:11], s[0:1], {KA['out']}
s_mul_i32 s12, s2, 37
s_lshr_b32 s12, s12, 8
s_mul_i32 s13, s12, 7
s_sub_u32 s13, s2, s13
v_and_b32 v1, 63, v0
v_lshrrev_b32 v2, 6, v0
s_mov_b32 s14, {28*14336}
v_mul_lo_u32 v3, v2, s14
v_lshl_add_u32 v3, v1, 2, v3
s_mul_i32 s15, s12, 1792
s_lshl_b32 s16, s13, 8
s_add_u32 s15, s15, s16
v_add_u32 v3, s15, v3
s_lshl_b32 s16, s13, 7
v_lshl_add_u32 v4, v1, 1, s16
s_mul_i32 s17, s12, 896
s_lshl_b32 s18, s12, 2
s_waitcnt lgkmcnt(0)""")
    srd(a, 20, 4, 112*14336, WS_PART)
    srd(a, 28, 4, 5376, WS_MOD)
    srd(a, 40, 4, 256+2*7168, WS_SEL)
    srd(a, 44, 10, XSZ)
    a(f"""s_add_u32 s6, s4, {WS_SEL}
s_addc_u32 s7, s5, 0
s_add_u32 s6, s6, s18
s_addc_u32 s7, s7, 0
s_load_dword s24, s[6:7], 0
s_load_dword s25, s[6:7], 32""")
    for i in range(28):
        a(f"s_mov_b32 s14, {14336*i}\nbuffer_load_dword v{8+i}, v3, s[20:23], s14 offen")
    a(f"""s_movk_i32 s14, 4480
buffer_load_ushort v40, v4, s[28:31], s14 offen
s_add_u32 s14, s17, 256
buffer_load_ushort v41, v4, s[40:43], s14 offen
s_add_u32 s14, s17, {256+7168}
buffer_load_ushort v42, v4, s[40:43], s14 offen""")
    for i in range(0, 28, 4):
        a(f"s_waitcnt vmcnt({27-i} )".replace(" )", ")"))
        if i == 0:
            a("v_add_f32 v8, v8, v9\nv_add_f32 v10, v10, v11")
        else:
            a(f"v_add_f32 v8, v8, v{8+i}\nv_add_f32 v10, v10, v{9+i}\nv_add_f32 v8, v8, v{10+i}\nv_add_f32 v10, v10, v{11+i}")
    a.stamp()
    a("""v_add_f32 v8, v8, v10
v_lshlrev_b32 v5, 2, v0
ds_write_b32 v5, v8
s_waitcnt lgkmcnt(0)
s_barrier
v_cmp_gt_u32 vcc, 64, v0
s_and_saveexec_b64 s[48:49], vcc
s_cbranch_execz K5_end
ds_read_b32 v9, v5 offset:256
ds_read_b32 v10, v5 offset:512
ds_read_b32 v11, v5 offset:768
s_waitcnt lgkmcnt(0)
v_add_f32 v8, v8, v9
v_add_f32 v10, v10, v11
v_add_f32 v8, v8, v10""")
    bf16r(a, 8, 8)
    a("v_mul_f32 v8, s25, v8")
    bf16r(a, 8, 8)
    a("""s_waitcnt vmcnt(0)
v_lshlrev_b32 v40, 16, v40
v_lshlrev_b32 v41, 16, v41
v_lshlrev_b32 v42, 16, v42
v_add_f32 v8, v8, v42""")
    bf16r(a, 8, 8)
    a("v_mul_f32 v8, v8, v40")
    bf16r(a, 8, 8)
    a("""v_add_f32 v8, v8, v41
v_cvt_pk_bf16_f32 v8, v8, v8
s_and_b32 s24, s24, 0x7ff
s_mul_i32 s24, s24, 896
buffer_store_short v8, v4, s[44:47], s24 offen""")
    a.stamp(); a.dump_stamps(4)
    a("K5_end:\ns_endpgm")
    return a.finalize(), 48
```

```python
from gen import *
from gen_k1 import cmul, WS_MODP, REG
from gen_k2 import DSQ, UCS, UCD, KH, KHD
import asmgen

KCL = KH + 2*KHD
PT = KCL + 2*2624
RED = PT + 384
K12_LDS = RED + 65536
SPIN_MAX = 200000
WS_GO = 0x1E0000
WS_WPK = 0xC00000

def gen_k12():
    a = Asm()
    a.stamp()
    a(f"""s_cmp_ge_u32 s2, 256
s_cbranch_scc1 KA_end
s_load_dwordx16 s[8:23], s[0:1], {KA['are']}
s_load_dwordx2 s[4:5], s[0:1], {KA['ws']}
s_load_dwordx2 s[62:63], s[0:1], {KA['dbg']}
s_load_dwordx2 s[6:7], s[0:1], {KA['x']}
s_load_dwordx4 s[48:51], s[0:1], {KA['c']}
v_lshrrev_b32 v4, 6, v0
v_and_b32 v1, 63, v0
v_readfirstlane_b32 s3, v4
s_cmp_eq_u32 s3, 8
s_cbranch_scc1 KA_ln
s_cmp_eq_u32 s3, 9
s_cbranch_scc1 KA_mod
s_cmp_ge_u32 s2, 224
s_cbranch_scc1 KA_rep""")
    a(f"""s_mov_b32 s90, s2
s_and_b32 s56, s2, 7
s_lshr_b32 s57, s2, 5
s_lshl_b32 s57, s57, 3
s_add_u32 s56, s56, s57
s_lshl_b32 s56, s56, 2
s_bfe_u32 s57, s2, 0x20003
s_add_u32 s2, s56, s57
s_lshl_b32 s56, s2, 10
v_lshlrev_b32 v5, 1, v0
v_add_u32 v5, s56, v5
v_and_b32 v2, 15, v1
v_lshrrev_b32 v3, 4, v1
s_mul_i32 s60, s3, {REG}
s_lshl_b32 s57, s2, 2
s_waitcnt lgkmcnt(0)""")
    for k in range(6):
        srd(a, 24+4*k, 8+2*k, 448*256*2)
    for k in range(6):
        a(f"buffer_load_ushort v{16+k}, v5, s[{24+4*k}:{27+4*k}], 0 offen")
    a(f"""s_add_u32 s20, s20, s57
s_addc_u32 s21, s21, 0
s_load_dword s58, s[20:21], 0
s_add_u32 s22, s22, s57
s_addc_u32 s23, s23, 0
s_load_dword s59, s[22:23], 0
s_mov_b32 m0, s60
s_branch KA_kgb""")
    a(f"""KA_ln:
s_setprio 3
s_waitcnt lgkmcnt(0)
s_lshl_b32 s8, s2, 3
v_lshrrev_b32 v7, 3, v1
v_add_u32 v7, s8, v7
v_and_b32 v2, 7, v1
s_movk_i32 s9, 896
v_mul_lo_u32 v3, v7, s9
v_lshl_add_u32 v3, v2, 4, v3
s_waitcnt lgkmcnt(0)""")
    srd(a, 12, 6, XSZ)
    srd(a, 16, 4, XSZ, WS_XNT)
    srd(a, 24, 62, 256)
    srd(a, 44, 4, 8192, WS_GO)
    a("""s_and_b32 s29, s2, 3
s_lshl_b32 s29, s29, 2
v_lshl_add_u32 v121, v1, 8, s29
buffer_load_dword v120, v121, s[44:47], 0 offen sc1
s_and_b32 s29, s2, 31
s_lshl_b32 s29, s29, 8
v_mov_b32 v122, s29
buffer_load_dwordx4 v[124:127], v122, s[44:47], 0 offen sc1""")
    for m in range(7):
        a(f"buffer_load_dwordx4 v[{8+4*m}:{11+4*m}], v3, s[12:15], 0 offen offset:{128*m}")
    a(f"""s_mov_b32 s20, {f2u(1.0/448)}
s_mov_b32 s21, {f2u(1e-5)}
v_lshlrev_b32 v4, 15, v2
v_lshl_add_u32 v4, v7, 4, v4""")
    a("s_branch KA_lnb")
    a(f"""KA_mod:
s_cmp_ge_u32 s2, 168
s_cbranch_scc1 KA_end
s_setprio 3
s_waitcnt lgkmcnt(0)
s_mov_b32 s28, s2
s_lshr_b32 s36, s28, 2
s_and_b32 s37, s28, 3
s_mul_i32 s12, s37, {112*5376}
s_lshl_b32 s13, s36, 7
s_add_u32 s12, s12, s13
v_lshrrev_b32 v5, 3, v1
v_and_b32 v2, 7, v1
s_movk_i32 s14, 5376
v_mul_lo_u32 v3, v5, s14
v_lshl_add_u32 v3, v2, 4, v3
v_add_u32 v3, s12, v3
s_mul_i32 s15, s37, 224
v_lshl_add_u32 v4, v5, 1, s15
s_waitcnt lgkmcnt(0)""")
    srd(a, 16, 48, 896)
    srd(a, 20, 50, 448*5376)
    srd(a, 24, 4, 4*2688*4, WS_MODP)
    srd(a, 32, 62, 256)
    srd(a, 44, 4, 8192, WS_GO)
    a("""s_and_b32 s29, s2, 3
s_lshl_b32 s29, s29, 2
v_lshl_add_u32 v121, v1, 8, s29
buffer_load_dword v120, v121, s[44:47], 0 offen sc1
s_and_b32 s29, s2, 31
s_lshl_b32 s29, s29, 8
v_mov_b32 v122, s29
buffer_load_dwordx4 v[124:127], v122, s[44:47], 0 offen sc1""")
    for it in range(14):
        a(f"buffer_load_ushort v{8+it}, v4, s[16:19], 0 offen offset:{16*it}")
    for it in range(14):
        a(f"s_mov_b32 s13, {it*8*5376}\nbuffer_load_dwordx4 v[{24+4*it}:{27+4*it}], v3, s[20:23], s13 offen")
    a("s_branch KA_modb")
    a("KA_kgb:")
    a(f"""v_lshrrev_b32 v10, 3, v2
v_and_b32 v11, 7, v2
v_lshl_add_u32 v7, v10, 7, v11
v_lshrrev_b32 v12, 2, v11
v_and_b32 v13, 3, v11
v_lshlrev_b32 v13, 1, v13
v_lshl_add_u32 v12, v12, 7, v13
v_add_u32 v12, 256, v12
v_lshrrev_b32 v13, 1, v11
v_and_b32 v14, 1, v11
v_lshlrev_b32 v14, 2, v14
v_lshl_add_u32 v13, v13, 7, v14
v_add_u32 v13, 512, v13
v_cmp_eq_u32 vcc, 0, v10
v_cndmask_b32 v8, v13, v12, vcc
v_lshlrev_b32 v12, 7, v2
v_add_u32 v12, 1024, v12
v_cmp_ge_u32 vcc, 8, v2
v_cndmask_b32 v9, 0, v12, vcc
v_lshlrev_b32 v10, 2, v2
v_add_u32 v10, {PT}, v10
ds_write_b32 v10, v7
ds_write_b32 v10, v8 offset:64
ds_write_b32 v10, v9 offset:128
v_mul_u32_u24 v6, 544, v2
v_lshl_add_u32 v6, v3, 4, v6
v_add_u32 v6, s60, v6
s_mov_b32 s52, {LOG2E}
s_mov_b32 s53, {INV2PI}
s_mov_b32 s50, 0x0000bf80
s_mov_b32 s51, 0xbf800000
s_lshr_b32 s57, s3, 2
s_lshl_b32 s57, s57, 4
s_waitcnt lgkmcnt(0)
s_lshr_b32 s58, s58, s57
s_lshl_b32 s58, s58, 16
v_mov_b32 v10, s58
v_mul_f32 v10, s52, v10
v_exp_f32 v10, v10""")
    bf16r(a, 10, 10)
    a("s_waitcnt vmcnt(0)")
    a.stamp()
    for k in range(6): a(f"v_lshlrev_b32 v{16+k}, 16, v{16+k}")
    a(f"""v_mul_f32 v16, v10, v16
v_mul_f32 v17, v10, v17
v_mul_f32 v18, v10, v18
v_mul_f32 v19, v10, v19
v_mul_f32 v16, s52, v16
v_mul_f32 v17, s53, v17""")
    Z = {e: 24 + 2*i for i, e in enumerate([1,2,4,8,16,32,64,128,256,512,1024,2048,3,5,6,7,384,640,768,896])}
    dirs = [1, 8, 128, 1024]
    for k, e in enumerate(dirs):
        a(f"v_mul_f32 v{64+k}, {float(e)}, v16\nv_mul_f32 v{68+k}, {float(e)}, v17")
    for k, e in enumerate(dirs):
        a(f"v_exp_f32 v{64+k}, v{64+k}\nv_fract_f32 v{68+k}, v{68+k}")
    for k, e in enumerate(dirs):
        a(f"v_cos_f32 v{Z[e]}, v{68+k}\nv_sin_f32 v{Z[e]+1}, v{68+k}")
    B = [72 + 2*b for b in range(16)]
    cmul(a, B[0], 20, 18)
    a(f"v_xor_b32 v{B[0]+1}, 0x80000000, v{B[0]+1}")
    for k, e in enumerate(dirs):
        a(f"v_mul_f32 v{Z[e]}, v{64+k}, v{Z[e]}\nv_mul_f32 v{Z[e]+1}, v{64+k}, v{Z[e]+1}")
    def sq(e2, e): cmul(a, Z[e2], Z[e], Z[e])
    sq(16, 8); sq(2, 1); sq(256, 128); sq(2048, 1024); sq(32, 16); sq(4, 2); sq(512, 256); sq(64, 32)
    tmpi = [0]
    TH = [104, 105, 106]; TT = [108, 110, 112]; TL = [107, 114, 115]
    pend = []
    def split_flush():
        while pend:
            t, l, row = pend.pop(0)
            a(f"""v_cvt_pk_bf16_f32 v{l}, v{t}, v{t+1}
ds_write_addtid_b32 v{l} offset:{row*544+256}""")
    def split_write(x, row):
        k = tmpi[0] % 3; tmpi[0] += 1
        h, t, l = TH[k], TT[k], TL[k]
        a(f"""v_cvt_pk_bf16_f32 v{h}, v{x}, v{x+1}
v_dot2_f32_bf16 v{t}, v{h}, s50, v{x}
v_dot2_f32_bf16 v{t+1}, v{h}, s51, v{x+1}
ds_write_addtid_b32 v{h} offset:{row*544}""")
        split_flush()
        pend.append((t, l, row))
    cmul(a, B[1], B[0], Z[8], True); cmul(a, B[2], B[0], Z[16], True); cmul(a, B[3], B[1], Z[16], True)
    for b in range(4): cmul(a, B[4+b], B[b], Z[32], True)
    for b in range(8): cmul(a, B[8+b], B[b], Z[64], True)
    for b in range(16): split_write(B[b], b)
    cmul(a, Z[3], Z[1], Z[2]); split_flush(); cmul(a, Z[5], Z[1], Z[4]); cmul(a, Z[6], Z[2], Z[4]); cmul(a, Z[384], Z[256], Z[128])
    cmul(a, Z[7], Z[3], Z[4]); cmul(a, Z[640], Z[512], Z[128]); cmul(a, Z[768], Z[512], Z[256]); cmul(a, Z[896], Z[512], Z[384])
    AV = B
    def gen_tile(T):
        rows = []
        def prod(i, x, y):
            cmul(a, AV[i], Z[x], Z[y]); rows.append((i, AV[i]))
        if T == 0:
            a(f"v_mov_b32 v{AV[0]}, 1.0\nv_mov_b32 v{AV[0]+1}, 0"); rows.append((0, AV[0]))
            for e in range(1, 8): rows.append((e, Z[e]))
            rows.append((8, Z[128]))
            for e in range(1, 8): prod(8+e, 128, e)
        elif T == 1:
            for ai, base in enumerate((256, 384)):
                rows.append((4*ai, Z[base]))
                for e in range(1, 4): prod(4*ai+e, base, 2*e)
            for ai, base in enumerate((512, 640, 768, 896)):
                rows.append((8+2*ai, Z[base])); prod(9+2*ai, base, 4)
        else:
            rows.append((0, Z[1024]))
            for ai in range(1, 8): prod(ai, 1024, 128*ai)
            rows.append((8, Z[2048]))
        return rows
    BF = 116; ACC = 156; AFR = [8, 16, 64, 148]
    rows = gen_tile(0)
    a("s_waitcnt lgkmcnt(0)")
    for s in range(4):
        a(f"ds_read_b128 v[{BF+8*s}:{BF+8*s+3}], v6 offset:{64*s}\nds_read_b128 v[{BF+8*s+4}:{BF+8*s+7}], v6 offset:{64*s+256}")
    a("s_waitcnt lgkmcnt(0)")
    for T in range(3):
        for (r, x) in rows: split_write(x, r)
        if T < 2: rows = gen_tile(T+1)
        split_flush()
        a("s_waitcnt lgkmcnt(0)")
        for s in range(4):
            f = AFR[s]
            a(f"ds_read_b128 v[{f}:{f+3}], v6 offset:{64*s}\nds_read_b128 v[{f+4}:{f+7}], v6 offset:{64*s+256}")
        c = ACC + 4*T
        for s in range(4):
            f = AFR[s]; b = BF + 8*s
            a(f"s_waitcnt lgkmcnt({6-2*s})")
            c0 = "0" if s == 0 else f"v[{c}:{c+3}]"
            a(f"""v_mfma_f32_16x16x32_bf16 v[{c}:{c+3}], v[{f}:{f+3}], v[{b}:{b+3}], {c0}
v_mfma_f32_16x16x32_bf16 v[{c}:{c+3}], v[{f+4}:{f+7}], v[{b}:{b+3}], v[{c}:{c+3}]
v_mfma_f32_16x16x32_bf16 v[{c}:{c+3}], v[{f}:{f+3}], v[{b+4}:{b+7}], v[{c}:{c+3}]""")
    a.stamp()
    a(f"""s_lshl_b32 s20, s2, 13
s_lshr_b32 s21, s2, 2
s_lshl_b32 s21, s21, 15
s_add_u32 s8, s4, s21
s_addc_u32 s9, s5, 0
s_add_u32 s8, s8, {WS_XNT}
s_addc_u32 s9, s9, 0
s_mov_b32 s10, 32768
s_mov_b32 s11, 0x00020000
s_and_b32 s21, s2, 3
s_lshl_b32 s21, s21, 2
s_add_u32 s16, s4, s20
s_addc_u32 s17, s5, 0
s_add_u32 s16, s16, {WS_YYT}
s_addc_u32 s17, s17, 0
s_mov_b32 s18, 8192
s_mov_b32 s19, 0x00020000
s_add_u32 s36, s4, {WS_MODP}
s_addc_u32 s37, s5, 0
s_mov_b32 s38, {4*2688*4}
s_mov_b32 s39, 0x00020000
s_add_u32 s40, s4, {WS_MOD}
s_addc_u32 s41, s5, 0
s_mov_b32 s42, 5376
s_mov_b32 s43, 0x00020000
v_bfrev_b32 v4, 1
v_lshl_add_u32 v40, v0, 4, s21
v_lshrrev_b32 v44, 1, v1
v_and_b32 v45, 1, v1
v_mul_u32_u24 v13, 448, v44
v_add_u32 v13, v13, v45
s_lshl_b32 s23, s2, 1
v_add_u32 v13, s23, v13
v_lshlrev_b32 v14, 2, v13
v_cmp_gt_u32 vcc, 12, v1
v_cndmask_b32 v14, v4, v14, vcc
v_lshlrev_b32 v13, 1, v13
v_cmp_gt_u32 vcc, 12, v0
v_cndmask_b32 v13, v4, v13, vcc""")
    a(f"""v_and_b32 v5, 255, v0
v_lshrrev_b32 v6, 8, v0
v_mul_u32_u24 v7, 2624, v6
v_add_u32 v7, {KCL}, v7
v_lshlrev_b32 v8, 3, v5""")
    for e in range(0, 8, 2):
        a(f"""v_add_u32 v9, {e}, v8
v_add_u32 v10, {e+1}, v8
v_cvt_f32_u32 v11, v9
v_cvt_f32_u32 v12, v10
v_cvt_pk_bf16_f32 v11, v11, v12
v_lshrrev_b32 v12, 16, v11
v_and_b32 v11, 0xffff, v11
v_subrev_u32 v11, 17024, v11
v_subrev_u32 v12, 17024, v12
v_cmp_gt_u32 vcc, 128, v8
v_cndmask_b32 v11, v11, v9, vcc
v_cndmask_b32 v12, v12, v10, vcc
v_lshl_add_u32 v{80+e}, v11, 2, v7
v_lshl_add_u32 v{81+e}, v12, 2, v7""")
    a(f"""v_lshrrev_b32 v88, 6, v0
v_and_b32 v89, 3, v88
v_lshrrev_b32 v90, 4, v1
v_and_b32 v91, 7, v1
v_bfe_u32 v92, v1, 3, 1
v_sub_u32 v96, 7, v91
v_mul_u32_u24 v96, {UCS}, v96
v_mul_u32_u24 v93, {UCD}, v6
v_add_u32 v96, v96, v93
v_lshl_add_u32 v96, v90, 4, v96
v_lshlrev_b32 v93, 8, v92
v_sub_u32 v96, v96, v93
v_lshl_add_u32 v96, v89, 7, v96
v_and_b32 v94, 15, v1
v_add_u32 v95, v94, v90
v_mul_u32_u24 v97, {KHD}, v6
v_lshl_add_u32 v97, v95, 4, v97
v_lshl_add_u32 v97, v89, 7, v97
v_lshlrev_b32 v98, 15, v6
v_lshl_add_u32 v98, v89, 13, v98
v_lshl_add_u32 v98, v94, 5, v98
v_lshrrev_b32 v93, 1, v90
v_lshl_add_u32 v98, v93, 9, v98
v_and_b32 v93, 1, v90
v_add_u32 v148, 256, v96
v_add_u32 v149, {KH}, v97
v_lshl_add_u32 v150, v93, 4, v98
v_add_u32 v150, {RED}, v150""")
    a(f"""v_lshlrev_b32 v10, 4, v1
v_add_u32 v10, s60, v10
ds_write_b128 v10, v[{ACC}:{ACC+3}]
ds_write_b128 v10, v[{ACC+4}:{ACC+7}] offset:1024
ds_write_b128 v10, v[{ACC+8}:{ACC+11}] offset:2048
s_waitcnt lgkmcnt(0)
s_barrier""")
    a.stamp()
    a(f"""s_and_b32 s61, s3, 3
s_cmp_lg_u32 s61, 3
s_cbranch_scc1 KA_red
s_cmp_lg_u32 s3, 3
s_cbranch_scc1 KA_bar2
s_add_u32 s44, s4, {WS_GO}
s_addc_u32 s45, s5, 0
s_mov_b32 s46, 8192
s_mov_b32 s47, 0x00020000
v_mov_b32 v11, {PT+208}
ds_read_b128 v[48:51], v11
s_and_b32 s29, s90, 31
s_lshl_b32 s29, s29, 8
v_mov_b32 v56, 0
s_mov_b32 s28, 0
s_mov_b64 exec, 1
s_waitcnt lgkmcnt(0)
KA_poll2:
buffer_load_dwordx4 v[52:55], v56, s[44:47], s29 offen sc1
s_add_u32 s28, s28, 1
s_waitcnt vmcnt(0)
v_cmp_eq_u32 s[30:31], v48, v52
v_cmp_eq_u32 s[32:33], v49, v53
v_cmp_eq_u32 s[34:35], v50, v54
v_cmp_eq_u32 vcc, v51, v55
s_or_b64 s[30:31], s[30:31], s[32:33]
s_or_b64 s[34:35], s[34:35], vcc
s_or_b64 s[30:31], s[30:31], s[34:35]
s_cbranch_scc0 KA_pdone
s_cmp_ge_u32 s28, {2*SPIN_MAX}
s_cbranch_scc1 KA_pdone
s_sleep 2
s_branch KA_poll2
KA_pdone:
s_mov_b64 exec, -1
s_branch KA_bar2
KA_red:
s_lshr_b32 s57, s3, 2
s_mul_i32 s56, s57, {4*REG}
s_lshl_b32 s58, s61, 10
s_add_u32 s56, s56, s58
v_lshlrev_b32 v10, 4, v1
v_add_u32 v10, s56, v10
ds_read_b128 v[48:51], v10
ds_read_b128 v[52:55], v10 offset:{REG}
ds_read_b128 v[56:59], v10 offset:{2*REG}
ds_read_b128 v[60:63], v10 offset:{3*REG}
s_lshl_b32 s56, s61, 6
s_add_u32 s56, s56, {PT}
v_lshlrev_b32 v11, 4, v3
v_add_u32 v11, s56, v11
ds_read_b128 v[64:67], v11
s_mul_i32 s56, s57, 2624
s_add_u32 s56, s56, {KCL}
v_lshlrev_b32 v12, 3, v2
s_cmp_eq_u32 s61, 2
s_cselect_b64 s[54:55], -1, 0
v_mov_b32 v76, {PT+192}
s_waitcnt lgkmcnt(0)""")
    for r in range(4):
        a(f"""v_add_f32 v{48+r}, v{48+r}, v{52+r}
v_add_f32 v{56+r}, v{56+r}, v{60+r}
v_add_f32 v{48+r}, v{48+r}, v{56+r}
v_add_u32 v{68+r}, v{64+r}, v12
v_cvt_f32_u32 v{72+r}, v{68+r}
v_lshrrev_b32 v{72+r}, 16, v{72+r}
v_subrev_u32 v{72+r}, 17024, v{72+r}
v_cmp_gt_u32 vcc, 128, v{68+r}
v_cndmask_b32 v{72+r}, v{72+r}, v{68+r}, vcc
v_lshl_add_u32 v{72+r}, v{72+r}, 2, s56
v_cmp_lt_u32 vcc, 2048, v{68+r}
v_cndmask_b32 v{72+r}, v{72+r}, v76, vcc
v_cmp_eq_u32 vcc, 0, v{64+r}
s_and_b64 vcc, vcc, s[54:55]
v_cndmask_b32 v{72+r}, v{72+r}, v76, vcc
ds_write_b32 v{72+r}, v{48+r}""")
    a("KA_bar2:")
    a("s_waitcnt lgkmcnt(0)\ns_barrier")
    a.stamp()
    a(f"""buffer_load_dword v16, v40, s[8:11], 0 offen sc1
s_movk_i32 s23, 8192
buffer_load_dword v17, v40, s[8:11], s23 offen sc1
s_movk_i32 s23, 16384
buffer_load_dword v18, v40, s[8:11], s23 offen sc1
s_movk_i32 s23, 24576
buffer_load_dword v19, v40, s[8:11], s23 offen sc1
buffer_load_dword v152, v14, s[36:39], 0 offen sc1
s_movk_i32 s23, {2688*4}
buffer_load_dword v153, v14, s[36:39], s23 offen sc1
s_movk_i32 s23, {2*2688*4}
buffer_load_dword v154, v14, s[36:39], s23 offen sc1
s_mov_b32 s23, {3*2688*4}
buffer_load_dword v155, v14, s[36:39], s23 offen sc1""")
    for e in range(8): a(f"ds_read_b32 v{28+e}, v{80+e}")
    a(f"""v_mov_b32 v36, 0
v_mov_b32 v37, 0
v_mov_b32 v38, 0
v_mov_b32 v39, 0
v_lshrrev_b32 v9, 4, v0
v_mul_u32_u24 v9, {UCS}, v9
v_and_b32 v10, 15, v0
v_lshl_add_u32 v9, v10, 4, v9
v_cmp_gt_u32 vcc, 256, v0
s_and_saveexec_b64 s[32:33], vcc
ds_write_b128 v9, v[36:39] offset:4096
s_mov_b64 exec, s[32:33]
v_mul_u32_u24 v9, {KHD}, v6
v_lshl_add_u32 v9, v5, 4, v9
v_add_u32 v9, {KH}, v9
v_cmp_gt_u32 vcc, 15, v5
s_and_saveexec_b64 s[32:33], vcc
ds_write_b128 v9, v[36:39]
ds_write_b128 v9, v[36:39] offset:4352
s_mov_b64 exec, s[32:33]
s_waitcnt lgkmcnt(0)""")
    for k in range(4):
        e = 28 + 2*k
        a(f"""v_cvt_pk_bf16_f32 v{112+k}, v{e}, v{e+1}
v_lshlrev_b32 v120, 16, v{112+k}
v_and_b32 v121, 0xffff0000, v{112+k}
v_sub_f32 v{e}, v{e}, v120
v_sub_f32 v{e+1}, v{e+1}, v121
v_cvt_pk_bf16_f32 v{116+k}, v{e}, v{e+1}""")
    a(f"""ds_write_b128 v9, v[112:115] offset:240
ds_write_b128 v9, v[116:119] offset:{4352+240}
s_waitcnt vmcnt(0)
v_add_f32 v152, v152, v153
v_add_f32 v154, v154, v155
v_add_f32 v152, v152, v154
v_cvt_pk_bf16_f32 v152, v152, v152
buffer_store_short v152, v13, s[40:43], 0 offen
v_and_b32 v152, 0xffff0000, v152
v_readlane_b32 s28, v152, 0
v_readlane_b32 s31, v152, 1
v_readlane_b32 s29, v152, 2
v_readlane_b32 s34, v152, 3
v_mov_b32 v42, s28
v_mov_b32 v43, s31
v_add_f32 v40, 1.0, s29
v_add_f32 v41, 1.0, s34
v_cvt_pk_bf16_f32 v40, v40, v41
v_and_b32 v41, 0xffff0000, v40
v_lshlrev_b32 v40, 16, v40
s_lshl_b32 s31, s59, 16
s_and_b32 s30, s59, 0xffff0000
v_mov_b32 v48, s31
v_mov_b32 v49, s30""")
    a.stamp()
    a("v_lshlrev_b32 v9, 1, v0\nv_sub_u32 v9, 1022, v9")
    for k in range(4):
        src = 16 + k; e = 52 + 2*k
        a(f"""v_lshlrev_b32 v{e}, 16, v{src}
v_and_b32 v{e+1}, 0xffff0000, v{src}
v_mul_f32 v{e}, v{e}, v40
v_mul_f32 v{e+1}, v{e+1}, v41
v_cvt_pk_bf16_f32 v{e}, v{e}, v{e+1}
v_and_b32 v{e+1}, 0xffff0000, v{e}
v_lshlrev_b32 v{e}, 16, v{e}
v_add_f32 v{e}, v{e}, v42
v_add_f32 v{e+1}, v{e+1}, v43
v_cvt_pk_bf16_f32 v{e}, v{e}, v{e+1}
ds_write_b16 v9, v{e} offset:{3072-1024*k}
ds_write_b16_d16_hi v9, v{e} offset:{3072-1024*k+UCD}""")
    a(f"""v_lshlrev_b32 v10, 3, v0
v_sub_u32 v10, 4088, v10
v_and_b32 v9, 1, v0
v_sub_u32 v9, 1, v9
v_mul_u32_u24 v9, {4*UCS}, v9
v_lshrrev_b32 v11, 1, v0
v_sub_u32 v11, 255, v11
v_lshl_add_u32 v9, v11, 4, v9
s_waitcnt lgkmcnt(0)
s_barrier""")
    for d in range(2):
        E = 52 + 8*d
        for k in range(3):
            a(f"ds_read_b64 v[{E+2*k}:{E+2*k+1}], v10 offset:{8*k + d*UCD}")
    W = 80
    for d in range(2):
        E = 52 + 8*d; q = W + 16*d
        a(f"s_waitcnt lgkmcnt({3-3*d})")
        for k in range(4): a(f"v_alignbit_b32 v{q+4+k}, v{E+k+1}, v{E+k}, 16")
        for k in range(4): a(f"v_mov_b32 v{q+8+k}, v{E+k+1}")
        for k in range(4): a(f"v_alignbit_b32 v{q+12+k}, v{E+k+2}, v{E+k+1}, 16")
    for d in range(2):
        E = 52 + 8*d; q = W + 16*d
        a(f"ds_write_b128 v9, v[{E}:{E+3}] offset:{d*UCD}")
        for sg in range(1, 4):
            a(f"ds_write_b128 v9, v[{q+4*sg}:{q+4*sg+3}] offset:{sg*UCS + d*UCD}")
    a("v_mov_b32 v160, v52\nv_mov_b32 v161, v53\nv_mov_b32 v162, v60\nv_mov_b32 v163, v61\nv_mov_b32 v164, v48\nv_mov_b32 v165, v49")
    def emit_hd():
        for k in range(4):
            m = 3 - k; o = 152 + 2*k
            for d in range(2):
                src = 160 + 2*d + (m >> 1)
                if m & 1: a(f"v_and_b32 v{o+d}, 0xffff0000, v{src}")
                else: a(f"v_lshlrev_b32 v{o+d}, 16, v{src}")
            a(f"""v_mul_f32 v{o}, v{o}, v164
v_mul_f32 v{o+1}, v{o+1}, v165
v_cvt_pk_bf16_f32 v{o}, v{o}, v{o+1}
v_and_b32 v{o+1}, 0xffff0000, v{o}
v_lshlrev_b32 v{o}, 16, v{o}""")
    a("s_waitcnt lgkmcnt(0)\ns_barrier")
    a.stamp()
    ACC = 112
    dq = DSQ(a)
    AF = (16, 48); BFc = 80
    def rdA(e, b1):
        r = AF[e] + 4*b1
        dq.issue(f"ds_read_b128 v[{r}:{r+3}], v148 offset:{64*e + 512*(7-b1)}", ("A", e, b1))
    def rdB(e, k1):
        r = BFc + 8*((e*8+k1) % 3)
        dq.issue(f"ds_read_b128 v[{r}:{r+3}], v149 offset:{64*e + 512*k1}", ("Bh", e, k1))
        dq.issue(f"ds_read_b128 v[{r+4}:{r+7}], v149 offset:{64*e + 512*k1 + 4352}", ("Bl", e, k1))
    rdB(0, 0)
    for b1 in range(8): rdA(0, b1)
    rdB(0, 1)
    seq = [(e, k1) for e in range(2) for k1 in range(8)]
    for si, (e, k1) in enumerate(seq):
        r = BFc + 8*(si % 3)
        if si + 2 < len(seq): rdB(*seq[si+2])
        if e == 0: rdA(1, k1)
        dq.wait(("Bh", e, k1))
        for b1 in range(8 - k1):
            dq.wait(("A", e, b1))
            t = k1 + b1; c = ACC + 4*t; ar = AF[e] + 4*b1
            c0 = "0" if (e == 0 and k1 == 0) else f"v[{c}:{c+3}]"
            a(f"v_mfma_f32_16x16x32_bf16 v[{c}:{c+3}], v[{ar}:{ar+3}], v[{r}:{r+3}], {c0}")
        dq.wait(("Bl", e, k1))
        for b1 in range(8 - k1):
            t = k1 + b1; c = ACC + 4*t; ar = AF[e] + 4*b1
            a(f"v_mfma_f32_16x16x32_bf16 v[{c}:{c+3}], v[{ar}:{ar+3}], v[{r+4}:{r+7}], v[{c}:{c+3}]")
        if si == 1: emit_hd()
    a.stamp()
    for t in range(8):
        a(f"ds_write_b128 v150, v[{ACC+4*t}:{ACC+4*t+3}] offset:{1024*t}")
    a(f"v_lshlrev_b32 v1, 4, v0\nv_add_u32 v2, {RED}, v1\ns_waitcnt lgkmcnt(0)\ns_barrier")
    for d in range(2):
        for q in range(4):
            r = 16 + 16*d + 4*q
            a(f"ds_read_b128 v[{r}:{r+3}], v2 offset:{32768*d + 8192*q}")
    a("s_waitcnt lgkmcnt(0)")
    for d in range(2):
        for k in range(4):
            r = 16 + 16*d + k
            a(f"v_add_f32 v{r}, v{r}, v{r+4}\nv_add_f32 v{r+8}, v{r+8}, v{r+12}\nv_add_f32 v{r}, v{r}, v{r+8}")
    for k in range(4):
        o = 152 + 2*k
        a(f"""v_cvt_pk_bf16_f32 v50, v{16+k}, v{32+k}
v_and_b32 v51, 0xffff0000, v50
v_lshlrev_b32 v50, 16, v50
v_add_f32 v50, v50, v{o}
v_add_f32 v51, v51, v{o+1}
v_cvt_pk_bf16_f32 v{52+k}, v50, v51""")
    a("buffer_store_dwordx4 v[52:55], v1, s[16:19], 0 offen\ns_mov_b32 s2, s90")
    a.stamp(); a.dump_stamps(0); a.nst = 1
    a("s_branch KA_end")
    a("KA_lnb:")
    X = 40
    for m in range(7):
        a(f"s_waitcnt vmcnt({6-m})")
        for q in range(4):
            a(f"v_lshlrev_b32 v{X+8*m+2*q}, 16, v{8+4*m+q}\nv_and_b32 v{X+8*m+2*q+1}, 0xffff0000, v{8+4*m+q}")
    a.stamp()
    ln_stats(a, X, 56, 110, 112, 100, 101, 102, 103, 20, 21)
    a.stamp()
    for m in range(7):
        for q in range(4):
            e = X+8*m+2*q
            a(f"""v_sub_f32 v{e}, v{e}, v110
v_sub_f32 v{e+1}, v{e+1}, v110
v_cvt_pk_bf16_f32 v{e}, v{e}, v{e+1}
v_and_b32 v{e+1}, 0xffff0000, v{e}
v_lshlrev_b32 v{e}, 16, v{e}
v_mul_f32 v{e}, v{e}, v112
v_mul_f32 v{e+1}, v{e+1}, v112
v_cvt_pk_bf16_f32 v{8+4*m+q}, v{e}, v{e+1}""")
        a(f"s_mov_b32 s22, {m*262144}\nbuffer_store_dwordx4 v[{8+4*m}:{11+4*m}], v4, s[16:19], s22 offen sc1")
    a(f"""s_waitcnt vmcnt(0)
s_cmp_lt_u32 s2, 224
s_cbranch_scc1 KA_sig
s_barrier
KA_sig:
s_and_b32 s29, s2, 3
s_lshl_b32 s29, s29, 6
v_mov_b32 v8, 1
v_cmp_eq_u32 vcc, 0, v1
v_bfrev_b32 v10, 1
v_cndmask_b32 v9, v10, 0, vcc
buffer_atomic_add v8, v9, s[24:27], s29 offen sc0
s_waitcnt vmcnt(0)
v_readfirstlane_b32 s30, v8
s_cmp_lg_u32 s30, 105
s_cbranch_scc1 KA_notlast
v_not_b32 v12, v120
buffer_store_dword v12, v121, s[44:47], 0 offen sc1
KA_notlast:""")
    a.stamp()
    a(f"""v_mov_b32 v11, {PT+208}
ds_write_b128 v11, v[124:127]
s_waitcnt lgkmcnt(0)""")
    if asmgen.STAMPS:
        a("v_mov_b32 v0, v1\ns_add_u32 s2, s2, 256")
        a.dump_stamps(0)
        a("s_mov_b64 exec, -1")
    a("s_branch KA_end")
    a.nst = 1
    a(f"""KA_rep:
s_cmp_ge_u32 s2, 252
s_cbranch_scc1 KA_end
s_waitcnt lgkmcnt(0)
s_load_dwordx4 s[8:11], s[0:1], {KA['wg']}
s_load_dwordx2 s[24:25], s[0:1], {KA['wd']}
s_sub_u32 s12, s2, 224
s_lshl_b32 s12, s12, 3
s_add_u32 s12, s12, s3
s_mul_i32 s28, s12, 7168
s_cmp_ge_u32 s12, 112
s_cselect_b32 s13, 1, 0
s_mul_i32 s14, s13, 112
s_sub_u32 s12, s12, s14
v_lshrrev_b32 v2, 4, v1
v_and_b32 v3, 15, v1
s_lshl_b32 s14, s12, 2
v_add_u32 v2, s14, v2
s_movk_i32 s15, 3584
v_mul_lo_u32 v5, v2, s15
v_lshl_add_u32 v5, v3, 4, v5
v_lshrrev_b32 v6, 1, v3
s_movk_i32 s15, 28672
v_mul_lo_u32 v6, v6, s15
v_lshl_add_u32 v6, v2, 5, v6
v_and_b32 v7, 1, v3
v_lshl_add_u32 v6, v7, 4, v6
s_mul_i32 s15, s13, 14336
v_add_u32 v6, s15, v6
s_waitcnt lgkmcnt(0)
s_cmp_eq_u32 s13, 1
s_cselect_b32 s16, s10, s8
s_cselect_b32 s17, s11, s9
s_mov_b32 s18, {448*3584}
s_mov_b32 s19, 0x00020000""")
    srd(a, 20, 4, 112*28672, WS_WPK)
    a("s_barrier")
    for c in range(14):
        a(f"buffer_load_dwordx4 v[{8+4*c}:{11+4*c}], v5, s[16:19], 0 offen offset:{256*c}")
    for c in range(14):
        a(f"s_mov_b32 s15, {8*28672*c}\ns_waitcnt vmcnt({13})\nbuffer_store_dwordx4 v[{8+4*c}:{11+4*c}], v6, s[20:23], s15 offen sc1")
    a(f"s_mov_b32 s26, {1792*896}\ns_mov_b32 s27, 0x00020000\nv_lshlrev_b32 v7, 4, v1")
    for c in range(7):
        a(f"s_add_u32 s15, s28, {1024*c}\nbuffer_load_dwordx4 v[{64+4*c}:{67+4*c}], v7, s[24:27], s15 offen")
    a("s_waitcnt vmcnt(0)\ns_branch KA_end")
    a("KA_modb:")
    a(f"s_mov_b32 s14, {LOG2E | 0x80000000}")
    a("s_waitcnt vmcnt(14)")
    for it in range(14):
        a(f"v_lshlrev_b32 v{8+it}, 16, v{8+it}\nv_mul_f32 v{80+it}, s14, v{8+it}")
    for it in range(14): a(f"v_exp_f32 v{80+it}, v{80+it}")
    for it in range(14): a(f"v_add_f32 v{80+it}, 1.0, v{80+it}")
    for it in range(14): a(f"v_rcp_f32 v{80+it}, v{80+it}")
    for it in range(14): a(f"v_mul_f32 v{8+it}, v{8+it}, v{80+it}")
    for it in range(0, 14, 2):
        a(f"v_cvt_pk_bf16_f32 v{8+it}, v{8+it}, v{9+it}\nv_and_b32 v{9+it}, 0xffff0000, v{8+it}\nv_lshlrev_b32 v{8+it}, 16, v{8+it}")
    for it in range(14):
        a(f"s_waitcnt vmcnt({13-it})")
        for q in range(4):
            a(f"v_lshlrev_b32 v96, 16, v{24+4*it+q}\nv_and_b32 v97, 0xffff0000, v{24+4*it+q}")
            if it == 0: a(f"v_mul_f32 v{100+2*q}, v96, v{8+it}\nv_mul_f32 v{101+2*q}, v97, v{8+it}")
            else: a(f"v_fmac_f32 v{100+2*q}, v96, v{8+it}\nv_fmac_f32 v{101+2*q}, v97, v{8+it}")
    a.stamp()
    for q in range(8):
        a(f"v_add_f32 v{100+q}, v{100+q}, v{100+q} row_ror:8 row_mask:0xf bank_mask:0xf")
    for q in range(8): a(f"v_mov_b32 v{110+q}, v{100+q}")
    for q in range(8): a(f"v_permlane32_swap_b32 v{100+q}, v{110+q}")
    for q in range(8): a(f"v_add_f32 v{100+q}, v{100+q}, v{110+q}")
    for q in range(8): a(f"v_mov_b32 v{110+q}, v{100+q}")
    for q in range(8): a(f"v_permlane16_swap_b32 v{100+q}, v{110+q}")
    for q in range(8): a(f"v_add_f32 v{100+q}, v{100+q}, v{110+q}")
    a(f"""s_mul_i32 s12, s37, {2688*4}
s_lshl_b32 s13, s36, 8
s_add_u32 s12, s12, s13
v_lshlrev_b32 v3, 5, v1
v_bfrev_b32 v4, 1
v_cmp_gt_u32 vcc, 8, v1
v_cndmask_b32 v3, v4, v3, vcc
buffer_store_dwordx4 v[100:103], v3, s[24:27], s12 offen sc1
buffer_store_dwordx4 v[104:107], v3, s[24:27], s12 offen offset:16 sc1
s_waitcnt vmcnt(0)""")
    a.stamp()
    if asmgen.STAMPS:
        a("v_mov_b32 v0, v1\ns_add_u32 s2, s28, 512")
        a.dump_stamps(0)
        a("s_mov_b64 exec, -1\ns_mov_b32 s2, s28")
    a(f"""s_and_b32 s29, s2, 3
s_lshl_b32 s29, s29, 6
v_mov_b32 v8, 1
v_cmp_eq_u32 vcc, 0, v1
v_bfrev_b32 v10, 1
v_cndmask_b32 v9, v10, 0, vcc
buffer_atomic_add v8, v9, s[32:35], s29 offen sc0
s_waitcnt vmcnt(0)
v_readfirstlane_b32 s30, v8
s_cmp_lg_u32 s30, 105
s_cbranch_scc1 KA_end
v_not_b32 v12, v120
buffer_store_dword v12, v121, s[44:47], 0 offen sc1
KA_end:
s_endpgm""")
    return a.finalize(), 168
```

```python
from gen import *
from gen_k1 import cmul, WS_MODP, REG
from gen_k2 import DSQ, UCS, UCD, KH, KHD
import asmgen

KCL = KH + 2*KHD
PT = KCL + 2*2624
RED = PT + 384
K12_LDS = RED + 65536
SPIN_MAX = 200000
WS_GO = 0x1E0000
WS_WPK = 0xC00000

def gen_k12():
    a = Asm()
    a.stamp()
    a(f"""s_cmp_ge_u32 s2, 256
s_cbranch_scc1 KA_end
s_load_dwordx16 s[8:23], s[0:1], {KA['are']}
s_load_dwordx2 s[4:5], s[0:1], {KA['ws']}
s_load_dwordx2 s[62:63], s[0:1], {KA['dbg']}
s_load_dwordx2 s[6:7], s[0:1], {KA['x']}
s_load_dwordx4 s[48:51], s[0:1], {KA['c']}
v_lshrrev_b32 v4, 6, v0
v_and_b32 v1, 63, v0
v_readfirstlane_b32 s3, v4
s_cmp_eq_u32 s3, 8
s_cbranch_scc1 KA_ln
s_cmp_eq_u32 s3, 9
s_cbranch_scc1 KA_mod
s_cmp_ge_u32 s2, 224
s_cbranch_scc1 KA_rep""")
    a(f"""s_mov_b32 s90, s2
s_and_b32 s56, s2, 7
s_lshr_b32 s57, s2, 5
s_lshl_b32 s57, s57, 3
s_add_u32 s56, s56, s57
s_lshl_b32 s56, s56, 2
s_bfe_u32 s57, s2, 0x20003
s_add_u32 s2, s56, s57
s_lshl_b32 s56, s2, 10
v_lshlrev_b32 v5, 1, v0
v_add_u32 v5, s56, v5
v_and_b32 v2, 15, v1
v_lshrrev_b32 v3, 4, v1
s_mul_i32 s60, s3, {REG}
s_lshl_b32 s57, s2, 2
s_waitcnt lgkmcnt(0)""")
    for k in range(6):
        srd(a, 24+4*k, 8+2*k, 448*256*2)
    for k in range(6):
        a(f"buffer_load_ushort v{16+k}, v5, s[{24+4*k}:{27+4*k}], 0 offen")
    a(f"""s_add_u32 s20, s20, s57
s_addc_u32 s21, s21, 0
s_load_dword s58, s[20:21], 0
s_add_u32 s22, s22, s57
s_addc_u32 s23, s23, 0
s_load_dword s59, s[22:23], 0
s_mov_b32 m0, s60
s_branch KA_kgb""")
    a(f"""KA_ln:
s_setprio 3
s_waitcnt lgkmcnt(0)
s_lshl_b32 s8, s2, 3
v_lshrrev_b32 v7, 3, v1
v_add_u32 v7, s8, v7
v_and_b32 v2, 7, v1
s_movk_i32 s9, 896
v_mul_lo_u32 v3, v7, s9
v_lshl_add_u32 v3, v2, 4, v3
s_waitcnt lgkmcnt(0)""")
    srd(a, 12, 6, XSZ)
    srd(a, 16, 4, XSZ, WS_XNT)
    srd(a, 24, 62, 256)
    srd(a, 44, 4, 8192, WS_GO)
    a("""s_and_b32 s29, s2, 3
s_lshl_b32 s29, s29, 2
v_lshl_add_u32 v121, v1, 8, s29
buffer_load_dword v120, v121, s[44:47], 0 offen sc1
s_and_b32 s29, s2, 31
s_lshl_b32 s29, s29, 8
v_mov_b32 v122, s29
buffer_load_dwordx4 v[124:127], v122, s[44:47], 0 offen sc1""")
    for m in range(7):
        a(f"buffer_load_dwordx4 v[{8+4*m}:{11+4*m}], v3, s[12:15], 0 offen offset:{128*m}")
    a(f"""s_mov_b32 s20, {f2u(1.0/448)}
s_mov_b32 s21, {f2u(1e-5)}
v_lshlrev_b32 v4, 15, v2
v_lshl_add_u32 v4, v7, 4, v4""")
    a("s_branch KA_lnb")
    a(f"""KA_mod:
s_cmp_ge_u32 s2, 168
s_cbranch_scc1 KA_end
s_setprio 3
s_waitcnt lgkmcnt(0)
s_mov_b32 s28, s2
s_lshr_b32 s36, s28, 2
s_and_b32 s37, s28, 3
s_mul_i32 s12, s37, {112*5376}
s_lshl_b32 s13, s36, 7
s_add_u32 s12, s12, s13
v_lshrrev_b32 v5, 3, v1
v_and_b32 v2, 7, v1
s_movk_i32 s14, 5376
v_mul_lo_u32 v3, v5, s14
v_lshl_add_u32 v3, v2, 4, v3
v_add_u32 v3, s12, v3
s_mul_i32 s15, s37, 224
v_lshl_add_u32 v4, v5, 1, s15
s_waitcnt lgkmcnt(0)""")
    srd(a, 16, 48, 896)
    srd(a, 20, 50, 448*5376)
    srd(a, 24, 4, 4*2688*4, WS_MODP)
    srd(a, 32, 62, 256)
    srd(a, 44, 4, 8192, WS_GO)
    a("""s_and_b32 s29, s2, 3
s_lshl_b32 s29, s29, 2
v_lshl_add_u32 v121, v1, 8, s29
buffer_load_dword v120, v121, s[44:47], 0 offen sc1
s_and_b32 s29, s2, 31
s_lshl_b32 s29, s29, 8
v_mov_b32 v122, s29
buffer_load_dwordx4 v[124:127], v122, s[44:47], 0 offen sc1""")
    for it in range(14):
        a(f"buffer_load_ushort v{8+it}, v4, s[16:19], 0 offen offset:{16*it}")
    for it in range(14):
        a(f"s_mov_b32 s13, {it*8*5376}\nbuffer_load_dwordx4 v[{24+4*it}:{27+4*it}], v3, s[20:23], s13 offen")
    a("s_branch KA_modb")
    a("KA_kgb:")
    a(f"""v_lshrrev_b32 v10, 3, v2
v_and_b32 v11, 7, v2
v_lshl_add_u32 v7, v10, 7, v11
v_lshrrev_b32 v12, 2, v11
v_and_b32 v13, 3, v11
v_lshlrev_b32 v13, 1, v13
v_lshl_add_u32 v12, v12, 7, v13
v_add_u32 v12, 256, v12
v_lshrrev_b32 v13, 1, v11
v_and_b32 v14, 1, v11
v_lshlrev_b32 v14, 2, v14
v_lshl_add_u32 v13, v13, 7, v14
v_add_u32 v13, 512, v13
v_cmp_eq_u32 vcc, 0, v10
v_cndmask_b32 v8, v13, v12, vcc
v_lshlrev_b32 v12, 7, v2
v_add_u32 v12, 1024, v12
v_cmp_ge_u32 vcc, 8, v2
v_cndmask_b32 v9, 0, v12, vcc
v_lshlrev_b32 v10, 2, v2
v_add_u32 v10, {PT}, v10
ds_write_b32 v10, v7
ds_write_b32 v10, v8 offset:64
ds_write_b32 v10, v9 offset:128
v_mul_u32_u24 v6, 544, v2
v_lshl_add_u32 v6, v3, 4, v6
v_add_u32 v6, s60, v6
s_mov_b32 s52, {LOG2E}
s_mov_b32 s53, {INV2PI}
s_mov_b32 s50, 0x0000bf80
s_mov_b32 s51, 0xbf800000
s_lshr_b32 s57, s3, 2
s_lshl_b32 s57, s57, 4
s_waitcnt lgkmcnt(0)
s_lshr_b32 s58, s58, s57
s_lshl_b32 s58, s58, 16
v_mov_b32 v10, s58
v_mul_f32 v10, s52, v10
v_exp_f32 v10, v10""")
    bf16r(a, 10, 10)
    a(f"""v_bfrev_b32 v24, 1
s_and_b32 s54, s2, 3
s_lshl_b32 s54, s54, 2
v_lshl_add_u32 v90, v0, 4, s54
v_lshrrev_b32 v25, 1, v1
v_and_b32 v26, 1, v1
v_mul_u32_u24 v27, 448, v25
v_add_u32 v27, v27, v26
s_lshl_b32 s54, s2, 1
v_add_u32 v27, s54, v27
v_lshlrev_b32 v89, 2, v27
v_cmp_gt_u32 vcc, 12, v1
v_cndmask_b32 v89, v24, v89, vcc
v_lshlrev_b32 v88, 1, v27
v_cmp_gt_u32 vcc, 12, v0
v_cndmask_b32 v88, v24, v88, vcc
v_and_b32 v28, 255, v0
v_lshrrev_b32 v29, 8, v0
v_mul_u32_u24 v30, 2624, v29
v_add_u32 v30, {KCL}, v30
v_lshlrev_b32 v31, 3, v28
v_cmp_gt_u32 vcc, 128, v31""")
    for e in range(0, 8, 2):
        a(f"""v_add_u32 v32, {e}, v31
v_add_u32 v33, {e+1}, v31
v_cvt_f32_u32 v34, v32
v_cvt_f32_u32 v35, v33
v_cvt_pk_bf16_f32 v34, v34, v35
v_lshrrev_b32 v35, 16, v34
v_and_b32 v34, 0xffff, v34
v_subrev_u32 v34, 17024, v34
v_subrev_u32 v35, 17024, v35
v_cndmask_b32 v34, v34, v32, vcc
v_cndmask_b32 v35, v35, v33, vcc
v_lshl_add_u32 v{80+e}, v34, 2, v30
v_lshl_add_u32 v{81+e}, v35, 2, v30""")
    a(f"""v_lshrrev_b32 v36, 6, v0
v_and_b32 v37, 3, v36
v_and_b32 v39, 7, v1
v_bfe_u32 v40, v1, 3, 1
v_sub_u32 v41, 7, v39
v_mul_u32_u24 v41, {UCS}, v41
v_mul_u32_u24 v42, {UCD}, v29
v_add_u32 v41, v41, v42
v_lshl_add_u32 v41, v3, 4, v41
v_lshlrev_b32 v42, 8, v40
v_sub_u32 v41, v41, v42
v_lshl_add_u32 v41, v37, 7, v41
v_add_u32 v91, 256, v41
v_add_u32 v43, v2, v3
v_mul_u32_u24 v44, {KHD}, v29
v_lshl_add_u32 v44, v43, 4, v44
v_lshl_add_u32 v44, v37, 7, v44
v_add_u32 v92, {KH}, v44
v_lshlrev_b32 v45, 15, v29
v_lshl_add_u32 v45, v37, 13, v45
v_lshl_add_u32 v45, v2, 5, v45
v_lshrrev_b32 v42, 1, v3
v_lshl_add_u32 v45, v42, 9, v45
v_and_b32 v42, 1, v3
v_lshl_add_u32 v45, v42, 4, v45
v_add_u32 v93, {RED}, v45
s_and_b32 s61, s3, 3
s_lshl_b32 s54, s61, 6
s_add_u32 s54, s54, {PT}
v_lshlrev_b32 v46, 4, v3
v_add_u32 v46, s54, v46
ds_read_b128 v[48:51], v46
s_lshr_b32 s55, s3, 2
s_mul_i32 s55, s55, 2624
s_add_u32 s55, s55, {KCL}
v_lshlrev_b32 v47, 3, v2
s_cmp_eq_u32 s61, 2
s_cselect_b64 s[48:49], -1, 0
v_mov_b32 v52, {PT+192}
v_lshlrev_b32 v53, 4, v0
v_add_u32 v53, {RED}, v53
ds_write_b128 v53, v[80:83]
ds_write_b128 v53, v[84:87] offset:8192
ds_write_b128 v53, v[88:91] offset:16384
ds_write_b128 v53, v[92:95] offset:24576
s_waitcnt lgkmcnt(4)""")
    for r in range(4):
        a(f"""v_add_u32 v54, v{48+r}, v47
v_cvt_f32_u32 v{96+r}, v54
v_lshrrev_b32 v{96+r}, 16, v{96+r}
v_subrev_u32 v{96+r}, 17024, v{96+r}
v_cmp_gt_u32 vcc, 128, v54
v_cndmask_b32 v{96+r}, v{96+r}, v54, vcc
v_lshl_add_u32 v{96+r}, v{96+r}, 2, s55
v_cmp_lt_u32 vcc, 2048, v54
v_cndmask_b32 v{96+r}, v{96+r}, v52, vcc
v_cmp_eq_u32 vcc, 0, v{48+r}
s_and_b64 vcc, vcc, s[48:49]
v_cndmask_b32 v{96+r}, v{96+r}, v52, vcc""")
    a("ds_write_b128 v53, v[96:99] offset:32768")
    a("s_waitcnt vmcnt(0)")
    a.stamp()
    for k in range(6): a(f"v_lshlrev_b32 v{16+k}, 16, v{16+k}")
    a(f"""v_mul_f32 v16, v10, v16
v_mul_f32 v17, v10, v17
v_mul_f32 v18, v10, v18
v_mul_f32 v19, v10, v19
v_mul_f32 v16, s52, v16
v_mul_f32 v17, s53, v17""")
    Z = {e: 24 + 2*i for i, e in enumerate([1,2,4,8,16,32,64,128,256,512,1024,2048,3,5,6,7,384,640,768,896])}
    dirs = [1, 8, 128, 1024]
    for k, e in enumerate(dirs):
        a(f"v_mul_f32 v{64+k}, {float(e)}, v16\nv_mul_f32 v{68+k}, {float(e)}, v17")
    for k, e in enumerate(dirs):
        a(f"v_exp_f32 v{64+k}, v{64+k}\nv_fract_f32 v{68+k}, v{68+k}")
    for k, e in enumerate(dirs):
        a(f"v_cos_f32 v{Z[e]}, v{68+k}\nv_sin_f32 v{Z[e]+1}, v{68+k}")
    B = [72 + 2*b for b in range(16)]
    cmul(a, B[0], 20, 18)
    a(f"v_xor_b32 v{B[0]+1}, 0x80000000, v{B[0]+1}")
    for k, e in enumerate(dirs):
        a(f"v_mul_f32 v{Z[e]}, v{64+k}, v{Z[e]}\nv_mul_f32 v{Z[e]+1}, v{64+k}, v{Z[e]+1}")
    def sq(e2, e): cmul(a, Z[e2], Z[e], Z[e])
    sq(16, 8); sq(2, 1); sq(256, 128); sq(2048, 1024); sq(32, 16); sq(4, 2); sq(512, 256); sq(64, 32)
    tmpi = [0]
    TH = [104, 105, 106]; TT = [108, 110, 112]; TL = [107, 114, 115]
    AV = B
    pend = []
    def sc_flush():
        while pend:
            t, dst = pend.pop(0)
            a(f"v_cvt_pk_bf16_f32 v{dst+1}, v{t}, v{t+1}")
    def split_compute(x, dst):
        k = tmpi[0] % 3; tmpi[0] += 1
        h, t = TH[k], TT[k]
        a(f"""v_cvt_pk_bf16_f32 v{h}, v{x}, v{x+1}
v_dot2_f32_bf16 v{t}, v{h}, s50, v{x}
v_dot2_f32_bf16 v{t+1}, v{h}, s51, v{x+1}""")
        sc_flush()
        a(f"v_mov_b32 v{dst}, v{h}")
        pend.append((t, dst))
    def wr(row):
        return [f"ds_write_addtid_b32 v{AV[row]} offset:{row*544}", f"ds_write_addtid_b32 v{AV[row]+1} offset:{row*544+256}"]
    cmul(a, B[1], B[0], Z[8], True); cmul(a, B[2], B[0], Z[16], True); cmul(a, B[3], B[1], Z[16], True)
    for b in range(4): cmul(a, B[4+b], B[b], Z[32], True)
    for b in range(8): cmul(a, B[8+b], B[b], Z[64], True)
    for b in range(16):
        split_compute(B[b], B[b])
        if b >= 2:
            for ln in wr(b-2): a(ln)
    cmul(a, Z[3], Z[1], Z[2]); sc_flush()
    cmul(a, Z[5], Z[1], Z[4])
    for ln in wr(14) + wr(15): a(ln)
    cmul(a, Z[6], Z[2], Z[4]); cmul(a, Z[384], Z[256], Z[128])
    cmul(a, Z[7], Z[3], Z[4]); cmul(a, Z[640], Z[512], Z[128]); cmul(a, Z[768], Z[512], Z[256]); cmul(a, Z[896], Z[512], Z[384])
    def comp_tile(T):
        rows = []
        def prod(i, x, y):
            cmul(a, AV[i], Z[x], Z[y]); split_compute(AV[i], AV[i]); rows.append(i)
        def direct(i, e):
            split_compute(Z[e], AV[i]); rows.append(i)
        if T == 0:
            a(f"v_mov_b32 v{AV[0]}, 0x3f80\nv_mov_b32 v{AV[0]+1}, 0"); rows.append(0)
            for e in range(1, 8): direct(e, e)
            direct(8, 128)
            for e in range(1, 8): prod(8+e, 128, e)
        elif T == 1:
            for ai, base in enumerate((256, 384)):
                direct(4*ai, base)
                for e in range(1, 4): prod(4*ai+e, base, 2*e)
            for ai, base in enumerate((512, 640, 768, 896)):
                direct(8+2*ai, base); prod(9+2*ai, base, 4)
        else:
            direct(0, 1024)
            for ai in range(1, 8): prod(ai, 1024, 128*ai)
            direct(8, 2048)
        sc_flush()
        return rows
    BF = 116; ACC = 156; AFR = [8, 16, 64, 148]
    a("s_waitcnt lgkmcnt(0)")
    for s in range(4):
        a(f"ds_read_b128 v[{BF+8*s}:{BF+8*s+3}], v6 offset:{64*s}\nds_read_b128 v[{BF+8*s+4}:{BF+8*s+7}], v6 offset:{64*s+256}")
    rows = comp_tile(0)
    a("s_waitcnt lgkmcnt(0)")
    for r in rows:
        for ln in wr(r): a(ln)
    for T in range(3):
        if T < 2: nrows = comp_tile(T+1)
        a("s_waitcnt lgkmcnt(0)")
        for s in range(4):
            f = AFR[s]
            a(f"ds_read_b128 v[{f}:{f+3}], v6 offset:{64*s}\nds_read_b128 v[{f+4}:{f+7}], v6 offset:{64*s+256}")
        a("s_waitcnt lgkmcnt(0)")
        wl = []
        if T < 2:
            for r in nrows: wl += wr(r)
        c = ACC + 4*T
        for s in range(4):
            f = AFR[s]; b = BF + 8*s
            for q, (fa, fb) in enumerate(((f, b), (f+4, b), (f, b+4))):
                c0 = "0" if (s == 0 and q == 0) else f"v[{c}:{c+3}]"
                a(f"v_mfma_f32_16x16x32_bf16 v[{c}:{c+3}], v[{fa}:{fa+3}], v[{fb}:{fb+3}], {c0}")
                for _ in range(3):
                    if wl: a(wl.pop(0))
        while wl: a(wl.pop(0))
    a.stamp()
    a(f"""s_lshl_b32 s20, s2, 13
s_lshr_b32 s21, s2, 2
s_lshl_b32 s21, s21, 15
s_add_u32 s8, s4, s21
s_addc_u32 s9, s5, 0
s_add_u32 s8, s8, {WS_XNT}
s_addc_u32 s9, s9, 0
s_mov_b32 s10, 32768
s_mov_b32 s11, 0x00020000
s_and_b32 s21, s2, 3
s_lshl_b32 s21, s21, 2
s_add_u32 s16, s4, s20
s_addc_u32 s17, s5, 0
s_add_u32 s16, s16, {WS_YYT}
s_addc_u32 s17, s17, 0
s_mov_b32 s18, 8192
s_mov_b32 s19, 0x00020000
s_add_u32 s36, s4, {WS_MODP}
s_addc_u32 s37, s5, 0
s_mov_b32 s38, {4*2688*4}
s_mov_b32 s39, 0x00020000
s_add_u32 s40, s4, {WS_MOD}
s_addc_u32 s41, s5, 0
s_mov_b32 s42, 5376
s_mov_b32 s43, 0x00020000
v_lshlrev_b32 v5, 4, v0
v_add_u32 v5, {RED}, v5
ds_read_b128 v[80:83], v5
ds_read_b128 v[84:87], v5 offset:8192
ds_read_b128 v[88:91], v5 offset:16384
ds_read_b128 v[92:95], v5 offset:24576
ds_read_b128 v[96:99], v5 offset:32768
v_and_b32 v5, 255, v0
v_lshrrev_b32 v6, 8, v0""")
    a(f"""v_lshlrev_b32 v10, 4, v1
v_add_u32 v10, s60, v10
ds_write_b128 v10, v[{ACC}:{ACC+3}]
ds_write_b128 v10, v[{ACC+4}:{ACC+7}] offset:1024
ds_write_b128 v10, v[{ACC+8}:{ACC+11}] offset:2048
s_waitcnt lgkmcnt(0)
v_mov_b32 v13, v88
v_mov_b32 v14, v89
v_mov_b32 v40, v90
v_mov_b32 v148, v91
v_mov_b32 v149, v92
v_mov_b32 v150, v93
s_barrier""")
    a.stamp()
    a(f"""s_and_b32 s61, s3, 3
s_cmp_lg_u32 s61, 3
s_cbranch_scc1 KA_red
s_cmp_lg_u32 s3, 3
s_cbranch_scc1 KA_bar2
s_add_u32 s44, s4, {WS_GO}
s_addc_u32 s45, s5, 0
s_mov_b32 s46, 8192
s_mov_b32 s47, 0x00020000
v_mov_b32 v11, {PT+208}
ds_read_b128 v[48:51], v11
s_and_b32 s29, s90, 31
s_lshl_b32 s29, s29, 8
v_mov_b32 v56, 0
s_mov_b32 s28, 0
s_mov_b64 exec, 1
s_waitcnt lgkmcnt(0)
KA_poll2:
buffer_load_dwordx4 v[52:55], v56, s[44:47], s29 offen sc1
s_add_u32 s28, s28, 1
s_waitcnt vmcnt(0)
v_cmp_eq_u32 s[30:31], v48, v52
v_cmp_eq_u32 s[32:33], v49, v53
v_cmp_eq_u32 s[34:35], v50, v54
v_cmp_eq_u32 vcc, v51, v55
s_or_b64 s[30:31], s[30:31], s[32:33]
s_or_b64 s[34:35], s[34:35], vcc
s_or_b64 s[30:31], s[30:31], s[34:35]
s_cbranch_scc0 KA_pdone
s_cmp_ge_u32 s28, {2*SPIN_MAX}
s_cbranch_scc1 KA_pdone
s_sleep 2
s_branch KA_poll2
KA_pdone:
s_mov_b64 exec, -1
s_branch KA_bar2
KA_red:
s_lshr_b32 s57, s3, 2
s_mul_i32 s56, s57, {4*REG}
s_lshl_b32 s58, s61, 10
s_add_u32 s56, s56, s58
v_lshlrev_b32 v10, 4, v1
v_add_u32 v10, s56, v10
ds_read_b128 v[48:51], v10
ds_read_b128 v[52:55], v10 offset:{REG}
ds_read_b128 v[56:59], v10 offset:{2*REG}
ds_read_b128 v[60:63], v10 offset:{3*REG}
s_waitcnt lgkmcnt(0)""")
    for r in range(4):
        a(f"""v_add_f32 v{48+r}, v{48+r}, v{52+r}
v_add_f32 v{56+r}, v{56+r}, v{60+r}
v_add_f32 v{48+r}, v{48+r}, v{56+r}
ds_write_b32 v{96+r}, v{48+r}""")
    a("KA_bar2:")
    a("s_waitcnt lgkmcnt(0)\ns_barrier")
    a.stamp()
    a(f"""buffer_load_dword v16, v40, s[8:11], 0 offen sc1
s_movk_i32 s23, 8192
buffer_load_dword v17, v40, s[8:11], s23 offen sc1
s_movk_i32 s23, 16384
buffer_load_dword v18, v40, s[8:11], s23 offen sc1
s_movk_i32 s23, 24576
buffer_load_dword v19, v40, s[8:11], s23 offen sc1
buffer_load_dword v152, v14, s[36:39], 0 offen sc1
s_movk_i32 s23, {2688*4}
buffer_load_dword v153, v14, s[36:39], s23 offen sc1
s_movk_i32 s23, {2*2688*4}
buffer_load_dword v154, v14, s[36:39], s23 offen sc1
s_mov_b32 s23, {3*2688*4}
buffer_load_dword v155, v14, s[36:39], s23 offen sc1""")
    for e in range(8): a(f"ds_read_b32 v{28+e}, v{80+e}")
    a(f"""v_mov_b32 v36, 0
v_mov_b32 v37, 0
v_mov_b32 v38, 0
v_mov_b32 v39, 0
v_lshrrev_b32 v9, 4, v0
v_mul_u32_u24 v9, {UCS}, v9
v_and_b32 v10, 15, v0
v_lshl_add_u32 v9, v10, 4, v9
v_cmp_gt_u32 vcc, 256, v0
s_and_saveexec_b64 s[32:33], vcc
ds_write_b128 v9, v[36:39] offset:4096
s_mov_b64 exec, s[32:33]
v_mul_u32_u24 v9, {KHD}, v6
v_lshl_add_u32 v9, v5, 4, v9
v_add_u32 v9, {KH}, v9
v_cmp_gt_u32 vcc, 15, v5
s_and_saveexec_b64 s[32:33], vcc
ds_write_b128 v9, v[36:39]
ds_write_b128 v9, v[36:39] offset:4352
s_mov_b64 exec, s[32:33]
s_waitcnt lgkmcnt(0)""")
    for k in range(4):
        e = 28 + 2*k
        a(f"""v_cvt_pk_bf16_f32 v{112+k}, v{e}, v{e+1}
v_lshlrev_b32 v120, 16, v{112+k}
v_and_b32 v121, 0xffff0000, v{112+k}
v_sub_f32 v{e}, v{e}, v120
v_sub_f32 v{e+1}, v{e+1}, v121
v_cvt_pk_bf16_f32 v{116+k}, v{e}, v{e+1}""")
    a(f"""ds_write_b128 v9, v[112:115] offset:240
ds_write_b128 v9, v[116:119] offset:{4352+240}
s_waitcnt vmcnt(0)
v_add_f32 v152, v152, v153
v_add_f32 v154, v154, v155
v_add_f32 v152, v152, v154
v_cvt_pk_bf16_f32 v152, v152, v152
buffer_store_short v152, v13, s[40:43], 0 offen
v_and_b32 v152, 0xffff0000, v152
v_readlane_b32 s28, v152, 0
v_readlane_b32 s31, v152, 1
v_readlane_b32 s29, v152, 2
v_readlane_b32 s34, v152, 3
v_mov_b32 v42, s28
v_mov_b32 v43, s31
v_add_f32 v40, 1.0, s29
v_add_f32 v41, 1.0, s34
v_cvt_pk_bf16_f32 v40, v40, v41
v_and_b32 v41, 0xffff0000, v40
v_lshlrev_b32 v40, 16, v40
s_lshl_b32 s31, s59, 16
s_and_b32 s30, s59, 0xffff0000
v_mov_b32 v48, s31
v_mov_b32 v49, s30""")
    a.stamp()
    a("v_lshlrev_b32 v9, 1, v0\nv_sub_u32 v9, 1022, v9")
    for k in range(4):
        src = 16 + k; e = 52 + 2*k
        a(f"""v_lshlrev_b32 v{e}, 16, v{src}
v_and_b32 v{e+1}, 0xffff0000, v{src}
v_mul_f32 v{e}, v{e}, v40
v_mul_f32 v{e+1}, v{e+1}, v41
v_cvt_pk_bf16_f32 v{e}, v{e}, v{e+1}
v_and_b32 v{e+1}, 0xffff0000, v{e}
v_lshlrev_b32 v{e}, 16, v{e}
v_add_f32 v{e}, v{e}, v42
v_add_f32 v{e+1}, v{e+1}, v43
v_cvt_pk_bf16_f32 v{e}, v{e}, v{e+1}
ds_write_b16 v9, v{e} offset:{3072-1024*k}
ds_write_b16_d16_hi v9, v{e} offset:{3072-1024*k+UCD}""")
    a(f"""v_lshlrev_b32 v10, 3, v0
v_sub_u32 v10, 4088, v10
v_and_b32 v9, 1, v0
v_sub_u32 v9, 1, v9
v_mul_u32_u24 v9, {4*UCS}, v9
v_lshrrev_b32 v11, 1, v0
v_sub_u32 v11, 255, v11
v_lshl_add_u32 v9, v11, 4, v9
s_waitcnt lgkmcnt(0)
s_barrier""")
    for d in range(2):
        E = 52 + 8*d
        for k in range(3):
            a(f"ds_read_b64 v[{E+2*k}:{E+2*k+1}], v10 offset:{8*k + d*UCD}")
    W = 80
    for d in range(2):
        E = 52 + 8*d; q = W + 16*d
        a(f"s_waitcnt lgkmcnt({3-3*d})")
        for k in range(4): a(f"v_alignbit_b32 v{q+4+k}, v{E+k+1}, v{E+k}, 16")
        for k in range(4): a(f"v_mov_b32 v{q+8+k}, v{E+k+1}")
        for k in range(4): a(f"v_alignbit_b32 v{q+12+k}, v{E+k+2}, v{E+k+1}, 16")
    for d in range(2):
        E = 52 + 8*d; q = W + 16*d
        a(f"ds_write_b128 v9, v[{E}:{E+3}] offset:{d*UCD}")
        for sg in range(1, 4):
            a(f"ds_write_b128 v9, v[{q+4*sg}:{q+4*sg+3}] offset:{sg*UCS + d*UCD}")
    a("v_mov_b32 v160, v52\nv_mov_b32 v161, v53\nv_mov_b32 v162, v60\nv_mov_b32 v163, v61\nv_mov_b32 v164, v48\nv_mov_b32 v165, v49")
    def emit_hd():
        for k in range(4):
            m = 3 - k; o = 152 + 2*k
            for d in range(2):
                src = 160 + 2*d + (m >> 1)
                if m & 1: a(f"v_and_b32 v{o+d}, 0xffff0000, v{src}")
                else: a(f"v_lshlrev_b32 v{o+d}, 16, v{src}")
            a(f"""v_mul_f32 v{o}, v{o}, v164
v_mul_f32 v{o+1}, v{o+1}, v165
v_cvt_pk_bf16_f32 v{o}, v{o}, v{o+1}
v_and_b32 v{o+1}, 0xffff0000, v{o}
v_lshlrev_b32 v{o}, 16, v{o}""")
    a("s_waitcnt lgkmcnt(0)\ns_barrier")
    a.stamp()
    ACC = 112
    dq = DSQ(a)
    AF = (16, 48); BFc = 80
    def rdA(e, b1):
        r = AF[e] + 4*b1
        dq.issue(f"ds_read_b128 v[{r}:{r+3}], v148 offset:{64*e + 512*(7-b1)}", ("A", e, b1))
    def rdB(e, k1):
        r = BFc + 8*((e*8+k1) % 3)
        dq.issue(f"ds_read_b128 v[{r}:{r+3}], v149 offset:{64*e + 512*k1}", ("Bh", e, k1))
        dq.issue(f"ds_read_b128 v[{r+4}:{r+7}], v149 offset:{64*e + 512*k1 + 4352}", ("Bl", e, k1))
    rdB(0, 0)
    for b1 in range(8): rdA(0, b1)
    rdB(0, 1)
    seq = [(e, k1) for e in range(2) for k1 in range(8)]
    for si, (e, k1) in enumerate(seq):
        r = BFc + 8*(si % 3)
        if si + 2 < len(seq): rdB(*seq[si+2])
        if e == 0: rdA(1, k1)
        dq.wait(("Bh", e, k1))
        for b1 in range(8 - k1):
            dq.wait(("A", e, b1))
            t = k1 + b1; c = ACC + 4*t; ar = AF[e] + 4*b1
            c0 = "0" if (e == 0 and k1 == 0) else f"v[{c}:{c+3}]"
            a(f"v_mfma_f32_16x16x32_bf16 v[{c}:{c+3}], v[{ar}:{ar+3}], v[{r}:{r+3}], {c0}")
        dq.wait(("Bl", e, k1))
        for b1 in range(8 - k1):
            t = k1 + b1; c = ACC + 4*t; ar = AF[e] + 4*b1
            a(f"v_mfma_f32_16x16x32_bf16 v[{c}:{c+3}], v[{ar}:{ar+3}], v[{r+4}:{r+7}], v[{c}:{c+3}]")
        if si == 1: emit_hd()
    a.stamp()
    for t in range(8):
        a(f"ds_write_b128 v150, v[{ACC+4*t}:{ACC+4*t+3}] offset:{1024*t}")
    a(f"v_lshlrev_b32 v1, 4, v0\nv_add_u32 v2, {RED}, v1\ns_waitcnt lgkmcnt(0)\ns_barrier")
    for d in range(2):
        for q in range(4):
            r = 16 + 16*d + 4*q
            a(f"ds_read_b128 v[{r}:{r+3}], v2 offset:{32768*d + 8192*q}")
    a("s_waitcnt lgkmcnt(0)")
    for d in range(2):
        for k in range(4):
            r = 16 + 16*d + k
            a(f"v_add_f32 v{r}, v{r}, v{r+4}\nv_add_f32 v{r+8}, v{r+8}, v{r+12}\nv_add_f32 v{r}, v{r}, v{r+8}")
    for k in range(4):
        o = 152 + 2*k
        a(f"""v_cvt_pk_bf16_f32 v50, v{16+k}, v{32+k}
v_and_b32 v51, 0xffff0000, v50
v_lshlrev_b32 v50, 16, v50
v_add_f32 v50, v50, v{o}
v_add_f32 v51, v51, v{o+1}
v_cvt_pk_bf16_f32 v{52+k}, v50, v51""")
    a("buffer_store_dwordx4 v[52:55], v1, s[16:19], 0 offen\ns_mov_b32 s2, s90")
    a.stamp(); a.dump_stamps(0); a.nst = 1
    a("s_branch KA_end")
    a("KA_lnb:")
    X = 40
    for m in range(7):
        a(f"s_waitcnt vmcnt({6-m})")
        for q in range(4):
            a(f"v_lshlrev_b32 v{X+8*m+2*q}, 16, v{8+4*m+q}\nv_and_b32 v{X+8*m+2*q+1}, 0xffff0000, v{8+4*m+q}")
    a.stamp()
    ln_stats(a, X, 56, 110, 112, 100, 101, 102, 103, 20, 21)
    a.stamp()
    for m in range(7):
        for q in range(4):
            e = X+8*m+2*q
            a(f"""v_sub_f32 v{e}, v{e}, v110
v_sub_f32 v{e+1}, v{e+1}, v110
v_cvt_pk_bf16_f32 v{e}, v{e}, v{e+1}
v_and_b32 v{e+1}, 0xffff0000, v{e}
v_lshlrev_b32 v{e}, 16, v{e}
v_mul_f32 v{e}, v{e}, v112
v_mul_f32 v{e+1}, v{e+1}, v112
v_cvt_pk_bf16_f32 v{8+4*m+q}, v{e}, v{e+1}""")
        a(f"s_mov_b32 s22, {m*262144}\nbuffer_store_dwordx4 v[{8+4*m}:{11+4*m}], v4, s[16:19], s22 offen sc1")
    a(f"""s_waitcnt vmcnt(0)
s_cmp_lt_u32 s2, 224
s_cbranch_scc1 KA_sig
s_barrier
KA_sig:
s_and_b32 s29, s2, 3
s_lshl_b32 s29, s29, 6
v_mov_b32 v8, 1
v_cmp_eq_u32 vcc, 0, v1
v_bfrev_b32 v10, 1
v_cndmask_b32 v9, v10, 0, vcc
buffer_atomic_add v8, v9, s[24:27], s29 offen sc0
s_waitcnt vmcnt(0)
v_readfirstlane_b32 s30, v8
s_cmp_lg_u32 s30, 105
s_cbranch_scc1 KA_notlast
v_not_b32 v12, v120
buffer_store_dword v12, v121, s[44:47], 0 offen sc1
KA_notlast:""")
    a.stamp()
    a(f"""v_mov_b32 v11, {PT+208}
ds_write_b128 v11, v[124:127]
s_waitcnt lgkmcnt(0)""")
    if asmgen.STAMPS:
        a("v_mov_b32 v0, v1\ns_add_u32 s2, s2, 256")
        a.dump_stamps(0)
        a("s_mov_b64 exec, -1")
    a("s_branch KA_end")
    a.nst = 1
    a(f"""KA_rep:
s_cmp_ge_u32 s2, 252
s_cbranch_scc1 KA_end
s_waitcnt lgkmcnt(0)
s_load_dwordx4 s[8:11], s[0:1], {KA['wg']}
s_load_dwordx2 s[24:25], s[0:1], {KA['wd']}
s_sub_u32 s12, s2, 224
s_lshl_b32 s12, s12, 3
s_add_u32 s12, s12, s3
s_mul_i32 s28, s12, 7168
s_cmp_ge_u32 s12, 112
s_cselect_b32 s13, 1, 0
s_mul_i32 s14, s13, 112
s_sub_u32 s12, s12, s14
v_lshrrev_b32 v2, 4, v1
v_and_b32 v3, 15, v1
s_lshl_b32 s14, s12, 2
v_add_u32 v2, s14, v2
s_movk_i32 s15, 3584
v_mul_lo_u32 v5, v2, s15
v_lshl_add_u32 v5, v3, 4, v5
v_lshrrev_b32 v6, 1, v3
s_movk_i32 s15, 28672
v_mul_lo_u32 v6, v6, s15
v_lshl_add_u32 v6, v2, 5, v6
v_and_b32 v7, 1, v3
v_lshl_add_u32 v6, v7, 4, v6
s_mul_i32 s15, s13, 14336
v_add_u32 v6, s15, v6
s_waitcnt lgkmcnt(0)
s_cmp_eq_u32 s13, 1
s_cselect_b32 s16, s10, s8
s_cselect_b32 s17, s11, s9
s_mov_b32 s18, {448*3584}
s_mov_b32 s19, 0x00020000""")
    srd(a, 20, 4, 112*28672, WS_WPK)
    a("s_barrier")
    for c in range(14):
        a(f"buffer_load_dwordx4 v[{8+4*c}:{11+4*c}], v5, s[16:19], 0 offen offset:{256*c}")
    for c in range(14):
        a(f"s_mov_b32 s15, {8*28672*c}\ns_waitcnt vmcnt({13})\nbuffer_store_dwordx4 v[{8+4*c}:{11+4*c}], v6, s[20:23], s15 offen sc1")
    a(f"s_mov_b32 s26, {1792*896}\ns_mov_b32 s27, 0x00020000\nv_lshlrev_b32 v7, 4, v1")
    for c in range(7):
        a(f"s_add_u32 s15, s28, {1024*c}\nbuffer_load_dwordx4 v[{64+4*c}:{67+4*c}], v7, s[24:27], s15 offen")
    a("s_waitcnt vmcnt(0)\ns_branch KA_end")
    a("KA_modb:")
    a(f"s_mov_b32 s14, {LOG2E | 0x80000000}")
    a("s_waitcnt vmcnt(14)")
    for it in range(14):
        a(f"v_lshlrev_b32 v{8+it}, 16, v{8+it}\nv_mul_f32 v{80+it}, s14, v{8+it}")
    for it in range(14): a(f"v_exp_f32 v{80+it}, v{80+it}")
    for it in range(14): a(f"v_add_f32 v{80+it}, 1.0, v{80+it}")
    for it in range(14): a(f"v_rcp_f32 v{80+it}, v{80+it}")
    for it in range(14): a(f"v_mul_f32 v{8+it}, v{8+it}, v{80+it}")
    for it in range(0, 14, 2):
        a(f"v_cvt_pk_bf16_f32 v{8+it}, v{8+it}, v{9+it}\nv_and_b32 v{9+it}, 0xffff0000, v{8+it}\nv_lshlrev_b32 v{8+it}, 16, v{8+it}")
    for it in range(14):
        a(f"s_waitcnt vmcnt({13-it})")
        for q in range(4):
            a(f"v_lshlrev_b32 v96, 16, v{24+4*it+q}\nv_and_b32 v97, 0xffff0000, v{24+4*it+q}")
            if it == 0: a(f"v_mul_f32 v{100+2*q}, v96, v{8+it}\nv_mul_f32 v{101+2*q}, v97, v{8+it}")
            else: a(f"v_fmac_f32 v{100+2*q}, v96, v{8+it}\nv_fmac_f32 v{101+2*q}, v97, v{8+it}")
    a.stamp()
    for q in range(8):
        a(f"v_add_f32 v{100+q}, v{100+q}, v{100+q} row_ror:8 row_mask:0xf bank_mask:0xf")
    for q in range(8): a(f"v_mov_b32 v{110+q}, v{100+q}")
    for q in range(8): a(f"v_permlane32_swap_b32 v{100+q}, v{110+q}")
    for q in range(8): a(f"v_add_f32 v{100+q}, v{100+q}, v{110+q}")
    for q in range(8): a(f"v_mov_b32 v{110+q}, v{100+q}")
    for q in range(8): a(f"v_permlane16_swap_b32 v{100+q}, v{110+q}")
    for q in range(8): a(f"v_add_f32 v{100+q}, v{100+q}, v{110+q}")
    a(f"""s_mul_i32 s12, s37, {2688*4}
s_lshl_b32 s13, s36, 8
s_add_u32 s12, s12, s13
v_lshlrev_b32 v3, 5, v1
v_bfrev_b32 v4, 1
v_cmp_gt_u32 vcc, 8, v1
v_cndmask_b32 v3, v4, v3, vcc
buffer_store_dwordx4 v[100:103], v3, s[24:27], s12 offen sc1
buffer_store_dwordx4 v[104:107], v3, s[24:27], s12 offen offset:16 sc1
s_waitcnt vmcnt(0)""")
    a.stamp()
    if asmgen.STAMPS:
        a("v_mov_b32 v0, v1\ns_add_u32 s2, s28, 512")
        a.dump_stamps(0)
        a("s_mov_b64 exec, -1\ns_mov_b32 s2, s28")
    a(f"""s_and_b32 s29, s2, 3
s_lshl_b32 s29, s29, 6
v_mov_b32 v8, 1
v_cmp_eq_u32 vcc, 0, v1
v_bfrev_b32 v10, 1
v_cndmask_b32 v9, v10, 0, vcc
buffer_atomic_add v8, v9, s[32:35], s29 offen sc0
s_waitcnt vmcnt(0)
v_readfirstlane_b32 s30, v8
s_cmp_lg_u32 s30, 105
s_cbranch_scc1 KA_end
v_not_b32 v12, v120
buffer_store_dword v12, v121, s[44:47], 0 offen sc1
KA_end:
s_endpgm""")
    return a.finalize(), 168
```
